```python
import torch

def _softmax(x, axis=-1):
    return torch.softmax(x, dim=axis)
def _gelu(x):
    return torch.nn.functional.gelu(x, approximate="tanh")
def _silu(x):
    return torch.nn.functional.silu(x)
def _sigmoid(x):
    return torch.sigmoid(x)
def _layernorm(x, axis=-1, eps=1e-5):
    m = x.mean(dim=axis, keepdim=True)
    v = x.var(dim=axis, keepdim=True, unbiased=False)
    return (x - m) / torch.sqrt(v + eps)
def _scatter_add(tgt, idx, src, axis=0):
    return tgt.clone().index_add_(axis, idx, src)
def _segment_sum(src, seg, n):
    out = torch.zeros((n,) + src.shape[1:], dtype=src.dtype)
    return out.index_add_(0, seg, src)
def _pad(x, pw):
    flat = tuple(v for pair in reversed(pw) for v in pair)
    return torch.nn.functional.pad(x, flat)

kernel_name = 'concat_heads__ssm_conv_s4d__ssm_conv_h3__prompt'

def setup_inputs():

    _w = (lambda a: (lambda t: t.to(torch.bfloat16) if t.is_floating_point() else t)(torch.as_tensor(a)))
    def _A_setup():
        Bsz, L, D, N = 1, 2048, 1024, 128
        return {
            "u": _w((lambda *s: torch.randn(*s, dtype=torch.bfloat16) * 0.05)(Bsz, L, D)),
            "log_A_real": _w((lambda *s: torch.randn(*s, dtype=torch.bfloat16) * 3.2)(D, N) * 0.5),
            "A_imag": _w((lambda *s: torch.randn(*s, dtype=torch.bfloat16) * 0.05)(D, N) * 3.14),
            "C_real": _w((lambda *s: torch.randn(*s, dtype=torch.bfloat16) * 0.1)(D, N) / N ** 0.5),
            "C_imag": _w((lambda *s: torch.randn(*s, dtype=torch.bfloat16) * 0.1)(D, N) / N ** 0.5),
            "log_dt": _w((lambda *s: torch.randn(*s, dtype=torch.bfloat16) * 0.05)(D) * 0.5 - 4.0),
            "D_skip": _w((lambda *s: torch.randn(*s, dtype=torch.bfloat16) * 0.05)(D)),
        }
    _A_in = _A_setup()

    def _B_setup():
        B, S, D = 1, 2048, 1024
        ks = 4
        return {
            "q": _w((lambda *s: torch.randn(*s, dtype=torch.bfloat16) * 0.05)(B, S, D)),
            "k": _w((lambda *s: torch.randn(*s, dtype=torch.bfloat16) * 0.2)(B, S, D)),
            "v": _w((lambda *s: torch.randn(*s, dtype=torch.bfloat16) * 0.2)(B, S, D)),
            "shift_k": _w((lambda *s: torch.randn(*s, dtype=torch.bfloat16) * 0.2)(D, ks) * 0.5),
            "ssm_k": _w((lambda *s: torch.randn(*s, dtype=torch.bfloat16) * 0.8)(D, S) * (1.0 / S ** 0.5)),
            "ssm_D": _w((lambda *s: torch.randn(*s, dtype=torch.bfloat16) * 0.2)(D)),
        }
    _B_in = _B_setup()

    return {
        "A_u": _A_in["u"],
        "A_log_A_real": _A_in["log_A_real"],
        "A_A_imag": _A_in["A_imag"],
        "A_C_real": _A_in["C_real"],
        "A_C_imag": _A_in["C_imag"],
        "A_log_dt": _A_in["log_dt"],
        "A_D_skip": _A_in["D_skip"],
        "B_q": _B_in["q"],
        "B_k": _B_in["k"],
        "B_v": _B_in["v"],
        "B_shift_k": _B_in["shift_k"],
        "B_ssm_k": _B_in["ssm_k"],
        "B_ssm_D": _B_in["ssm_D"],
    }

def reference(A_u, A_log_A_real, A_A_imag, A_C_real, A_C_imag, A_log_dt, A_D_skip, B_q, B_k, B_v, B_shift_k, B_ssm_k, B_ssm_D):
    def _A_ref(u, log_A_real, A_imag, C_real, C_imag, log_dt, D_skip):
        L = u.shape[1]
        dt = torch.exp(log_dt)
        A = -torch.exp(log_A_real) + 1j * A_imag
        C = (C_real + 1j * C_imag) * dt[:, None]
        pos = (lambda x, dt: x.to(dt))(torch.arange(L), log_dt.dtype)
        P = torch.exp((A * dt[:, None])[:, :, None] * pos[None, None, :])
        K = 2.0 * torch.einsum("dn,dnl->dl", C, P).real
        L2 = 2 * L
        u_t = (lambda x, *d: x.permute(*d))(u, 0, 2, 1)
        Kf = (lambda x, *a, **k: torch.fft.rfft(x.float(), *a, **k))(K, L2)
        Uf = (lambda x, *a, **k: torch.fft.rfft(x.float(), *a, **k))(u_t, L2)
        y = (lambda x, *a, **k: torch.fft.irfft(x, *a, **k).to(torch.bfloat16))(Uf * Kf[None, :, :], L2)[:, :, :L]
        y = (lambda x, *d: x.permute(*d))(y, 0, 2, 1)
        return y + u * D_skip[None, None, :]

    def _B_ref(q, k, v, shift_k, ssm_k, ssm_D):
        B, S, D = q.shape
        ks = shift_k.shape[-1]
        k_pad = _pad(k, ((0, 0), (ks - 1, 0), (0, 0)))
        k_shift = torch.zeros_like(k)
        for t in range(ks):
            k_shift = k_shift + k_pad[:, t:t + S, :] * shift_k[:, ks - 1 - t][None, None, :]
        kv = k_shift * v
        L = 2 * S
        kv_pad = _pad(kv, ((0, 0), (0, S), (0, 0)))
        kf_pad = _pad(ssm_k, ((0, 0), (0, S)))
        kv_f = (lambda x, axes=(-2,-1): torch.fft.rfft2(x.float(), dim=axes))(kv_pad[:, None, :, :], axes=(1, 2))
        kf_f = (lambda x, axes=(-2,-1): torch.fft.rfft2(x.float(), dim=axes))(kf_pad[:, None, :], axes=(1, 2))
        kf_f = (lambda x, *d: x.permute(*d))(kf_f, 1, 2, 0)
        y_f = kv_f * kf_f[None, :, :, :]
        y = (lambda x, s, axes=(-2,-1): torch.fft.irfft2(x, s=s, dim=axes).to(torch.bfloat16))(y_f, (1, L), axes=(1, 2))[:, 0, :S, :]
        y = y + kv * ssm_D[None, None, :]
        return q * y

    a = _A_ref(A_u, A_log_A_real, A_A_imag, A_C_real, A_C_imag, A_log_dt, A_D_skip)
    b = _B_ref(B_q, B_k, B_v, B_shift_k, B_ssm_k, B_ssm_D)
    return torch.concatenate([a, b], axis=-1)
```

```python
import sys

NAME = "concat_heads__ssm_conv_s4d__ssm_conv_h3__prompt"
OUT = "cdna_kernels/%s.s" % NAME

L = []
def A(s=""):
    L.append(s)

def vr(a, n=1):
    return "v%d" % a if n == 1 else "v[%d:%d]" % (a, a + n - 1)
def sr(a, n=1):
    return "s%d" % a if n == 1 else "s[%d:%d]" % (a, a + n - 1)

LOG2E = 0x3fb8aa3b
INV2PI = 0x3e22f983
MB = 1 << 20
WS_U, WS_KV, WS_Q, WS_KA = 0, 4 * MB, 8 * MB, 12 * MB

P_U, P_LAR, P_AIM, P_CR, P_CI, P_LDT, P_DSK, P_Q, P_K, P_V, P_SH, P_SSK, P_SSD, P_OUT, P_DBG, P_WS = [8 + 2 * i for i in range(16)]

def load_kernargs():
    A("  s_load_dwordx16 s[8:23], s[0:1], 0")
    A("  s_load_dwordx16 s[24:39], s[0:1], 64")
    A("  s_waitcnt lgkmcnt(0)")

def srd(dst, ptr, nbytes, add=0):
    if add:
        A("  s_add_u32 s%d, s%d, 0x%x" % (dst, ptr, add))
        A("  s_addc_u32 s%d, s%d, 0" % (dst + 1, ptr + 1))
        A("  s_and_b32 s%d, s%d, 0xffff" % (dst + 1, dst + 1))
    else:
        A("  s_mov_b32 s%d, s%d" % (dst, ptr))
        A("  s_and_b32 s%d, s%d, 0xffff" % (dst + 1, ptr + 1))
    A("  s_mov_b32 s%d, 0x%x" % (dst + 2, nbytes))
    A("  s_mov_b32 s%d, 0x00020000" % (dst + 3))

def cmul(d, e, w, t):
    A("  v_pk_mul_f32 %s, %s, %s op_sel:[1,1] op_sel_hi:[1,0]" % (vr(t, 2), vr(e, 2), vr(w, 2)))
    A("  v_pk_fma_f32 %s, %s, %s, %s op_sel:[0,0,0] op_sel_hi:[0,1,1] neg_lo:[0,0,1]" % (vr(d, 2), vr(e, 2), vr(w, 2), vr(t, 2)))

K1_LDS = 34816
def k1():
    A(".globl prep_kernel")
    A(".p2align 8")
    A(".type prep_kernel,@function")
    A("prep_kernel:")
    load_kernargs()
    A("  s_cmp_lt_u32 s2, 1024")
    A("  s_cbranch_scc1 L_kgen")
    A("  s_cmp_lt_u32 s2, 2560")
    A("  s_cbranch_scc0 L_k1_end")
    A("  s_sub_u32 s3, s2, 1024")
    A("  s_lshr_b32 s40, s3, 9")
    A("  s_and_b32 s41, s3, 511")
    A("  s_lshr_b32 s42, s41, 4")
    A("  s_and_b32 s43, s41, 15")
    A("  s_mov_b32 s60, 0xffff0000")
    A("  s_mov_b32 s61, 0x05040100")
    A("  s_mov_b32 s62, 0x07060302")
    A("  s_lshl_b32 s3, s40, 22")
    A("  s_add_u32 s44, s%d, s3" % P_WS)
    A("  s_addc_u32 s45, s%d, 0" % (P_WS + 1))
    A("  s_and_b32 s45, s45, 0xffff")
    A("  s_mov_b32 s46, 0x%x" % (4 * MB))
    A("  s_mov_b32 s47, 0x00020000")
    A("  v_lshrrev_b32 v1, 3, v0")
    A("  v_and_b32 v2, 7, v0")
    A("  s_lshl_b32 s3, s42, 17")
    A("  s_lshl_b32 s48, s43, 7")
    A("  s_add_u32 s3, s3, s48")
    A("  v_lshlrev_b32 v3, 13, v1")
    A("  v_lshl_add_u32 v3, v2, 4, v3")
    A("  v_add_u32 v3, s3, v3")
    R0 = 16
    A("  s_cmp_eq_u32 s40, 1")
    A("  s_cbranch_scc1 L_tr_kv")
    A("  s_cmp_eq_u32 s40, 0")
    A("  s_cselect_b32 s48, s%d, s%d" % (P_U, P_Q))
    A("  s_cselect_b32 s49, s%d, s%d" % (P_U + 1, P_Q + 1))
    A("  s_and_b32 s49, s49, 0xffff")
    A("  s_mov_b32 s50, 0x%x" % (4 * MB))
    A("  s_mov_b32 s51, 0x00020000")
    for i in range(4):
        A("  v_add_u32 v4, %d, v3" % (2048 * i))
        A("  buffer_load_dwordx4 %s, v4, s[48:51], 0 offen" % vr(R0 + 4 * i, 4))
    A("  s_waitcnt vmcnt(0)")
    A("  s_branch L_tr_store")
    A("L_tr_kv:")
    srd(48, P_K, 4 * MB)
    srd(52, P_V, 4 * MB)
    srd(56, P_SH, 8192)
    KR, VR_, WR = 32, 60, 76
    for i in range(7):
        off = 2048 * (i - 3)
        if off < 0:
            A("  v_subrev_u32 v4, %d, v3" % (-off))
        else:
            A("  v_add_u32 v4, %d, v3" % off)
        A("  buffer_load_dwordx4 %s, v4, s[48:51], 0 offen" % vr(KR + 4 * i, 4))
    for i in range(4):
        A("  v_add_u32 v4, %d, v3" % (2048 * i))
        A("  buffer_load_dwordx4 %s, v4, s[52:55], 0 offen" % vr(VR_ + 4 * i, 4))
    A("  s_lshl_b32 s3, s43, 9")
    A("  v_lshlrev_b32 v5, 6, v2")
    A("  v_add_u32 v5, s3, v5")
    for i in range(4):
        A("  buffer_load_dwordx4 %s, v5, s[56:59], 0 offen offset:%d" % (vr(WR + 4 * i, 4), 16 * i))
    A("  s_waitcnt vmcnt(0)")
    KF, WF, VF, AC, PT, TM = 96, 112, 120, 122, 124, 126
    def rnd(p):
        A("  v_cvt_pk_bf16_f32 v%d, v%d, v%d" % (TM, p, p + 1))
        A("  v_lshlrev_b32 v%d, 16, v%d" % (p, TM))
        A("  v_and_b32 v%d, s60, v%d" % (p + 1, TM))
    for d in range(4):
        for h in range(2):
            e = 2 * d + h
            A("  v_lshlrev_b32 v%d, 16, v%d" % (WF + 0 + h, WR + 2 * e))
            A("  v_and_b32 v%d, s60, v%d" % (WF + 2 + h, WR + 2 * e))
            A("  v_lshlrev_b32 v%d, 16, v%d" % (WF + 4 + h, WR + 2 * e + 1))
            A("  v_and_b32 v%d, s60, v%d" % (WF + 6 + h, WR + 2 * e + 1))
        for i in range(7):
            A("  v_lshlrev_b32 v%d, 16, v%d" % (KF + 2 * i, KR + 4 * i + d))
            A("  v_and_b32 v%d, s60, v%d" % (KF + 2 * i + 1, KR + 4 * i + d))
        for rho in range(4):
            A("  v_pk_mul_f32 %s, %s, %s" % (vr(AC, 2), vr(KF + 2 * rho, 2), vr(WF + 6, 2)))
            rnd(AC)
            for a in (2, 1, 0):
                A("  v_pk_mul_f32 %s, %s, %s" % (vr(PT, 2), vr(KF + 2 * (rho + 3 - a), 2), vr(WF + 2 * a, 2)))
                rnd(PT)
                A("  v_pk_add_f32 %s, %s, %s" % (vr(AC, 2), vr(AC, 2), vr(PT, 2)))
                rnd(AC)
            A("  v_lshlrev_b32 v%d, 16, v%d" % (VF, VR_ + 4 * rho + d))
            A("  v_and_b32 v%d, s60, v%d" % (VF + 1, VR_ + 4 * rho + d))
            A("  v_pk_mul_f32 %s, %s, %s" % (vr(AC, 2), vr(AC, 2), vr(VF, 2)))
            A("  v_cvt_pk_bf16_f32 v%d, v%d, v%d" % (R0 + 4 * rho + d, AC, AC + 1))
    A("L_tr_store:")
    A("  v_mul_u32_u24 v6, %d, v2" % (8 * 144))
    A("  v_lshl_add_u32 v6, v1, 3, v6")
    T0 = 8
    for d in range(4):
        A("  v_perm_b32 v%d, v%d, v%d, s61" % (T0, R0 + 4 + d, R0 + d))
        A("  v_perm_b32 v%d, v%d, v%d, s61" % (T0 + 1, R0 + 12 + d, R0 + 8 + d))
        A("  v_perm_b32 v%d, v%d, v%d, s62" % (T0 + 2, R0 + 4 + d, R0 + d))
        A("  v_perm_b32 v%d, v%d, v%d, s62" % (T0 + 3, R0 + 12 + d, R0 + 8 + d))
        A("  ds_write_b64 v6, %s offset:%d" % (vr(T0, 2), 144 * (2 * d)))
        A("  ds_write_b64 v6, %s offset:%d" % (vr(T0 + 2, 2), 144 * (2 * d + 1)))
        A("  s_nop 1")
    A("  s_waitcnt lgkmcnt(0)")
    A("  s_barrier")
    A("  v_lshrrev_b32 v1, 3, v0")
    A("  v_and_b32 v2, 7, v0")
    A("  v_mul_u32_u24 v6, 144, v1")
    A("  v_lshl_add_u32 v6, v2, 4, v6")
    for it in range(4):
        A("  ds_read_b128 %s, v6 offset:%d" % (vr(R0 + 4 * it, 4), 16 * 144 * it))
    A("  s_lshl_b32 s3, s43, 18")
    A("  s_lshl_b32 s48, s42, 7")
    A("  s_add_u32 s3, s3, s48")
    A("  v_lshlrev_b32 v7, 12, v1")
    A("  v_lshl_add_u32 v7, v2, 4, v7")
    A("  v_add_u32 v7, s3, v7")
    for it in range(4):
        A("  s_waitcnt lgkmcnt(%d)" % (3 - it))
        A("  v_add_u32 v4, 0x%x, v7" % (16 * 4096 * it))
        A("  buffer_store_dwordx4 %s, v4, s[44:47], 0 offen" % vr(R0 + 4 * it, 4))
    A("  s_branch L_k1_end")

    A("L_kgen:")
    srd(40, P_LAR, 262144)
    srd(44, P_AIM, 262144)
    srd(48, P_CR, 262144)
    srd(52, P_CI, 262144)
    srd(56, P_LDT, 2048)
    srd(60, P_WS, 4 * MB, WS_KA)
    A("  s_mov_b32 s64, 0xffff0000")
    A("  s_lshl_b32 s3, s2, 8")
    A("  v_lshlrev_b32 v1, 1, v0")
    A("  v_add_u32 v1, s3, v1")
    A("  s_lshl_b32 s3, s2, 1")
    A("  v_mov_b32 v2, s3")
    A("  buffer_load_ushort v3, v1, s[40:43], 0 offen")
    A("  buffer_load_ushort v4, v1, s[44:47], 0 offen")
    A("  buffer_load_ushort v5, v1, s[48:51], 0 offen")
    A("  buffer_load_ushort v6, v1, s[52:55], 0 offen")
    A("  buffer_load_ushort v7, v2, s[56:59], 0 offen")
    A("  v_and_b32 v8, 63, v0")
    A("  v_lshrrev_b32 v9, 6, v0")
    A("  v_mul_u32_u24 v10, 17408, v9")
    A("  v_lshl_add_u32 v11, v8, 2, v10")
    A("  v_and_b32 v12, 15, v8")
    A("  v_lshrrev_b32 v13, 4, v8")
    A("  v_mul_u32_u24 v14, 272, v12")
    A("  v_lshl_add_u32 v14, v13, 4, v14")
    A("  v_add_u32 v14, v14, v10")
    A("  s_waitcnt vmcnt(0)")
    for r in (3, 4, 5, 6, 7):
        A("  v_lshlrev_b32 v%d, 16, v%d" % (r, r))
    A("  v_mul_f32 v7, 0x%x, v7" % LOG2E)
    A("  v_mul_f32 v3, 0x%x, v3" % LOG2E)
    A("  v_exp_f32 v7, v7")
    A("  v_exp_f32 v3, v3")
    A("  s_nop 0")
    A("  v_cvt_pk_bf16_f32 v15, v7, v3")
    A("  v_lshlrev_b32 v7, 16, v15")
    A("  v_and_b32 v3, s64, v15")
    ZR, ZI, C = 16, 17, 18
    A("  v_mul_f32 v%d, v3, v7" % ZR)
    A("  v_sub_f32 v%d, 0, v%d" % (ZR, ZR))
    A("  v_mul_f32 v%d, v4, v7" % ZI)
    A("  v_mul_f32 v%d, v5, v7" % C)
    A("  v_mul_f32 v%d, v6, v7" % (C + 1))
    A("  v_add_f32 v%d, v%d, v%d" % (C, C, C))
    A("  v_add_f32 v%d, v%d, v%d" % (C + 1, C + 1, C + 1))
    Wp, WW, E, T, HI, LO, TP = 20, 22, 24, 26, 28, 29, 30
    def cexp(d, p):
        A("  v_mul_f32 v%d, 0x%08x, v%d" % (TP, f32bits(float(p)), ZR))
        A("  v_mul_f32 v%d, 0x%08x, v%d" % (TP + 1, f32bits(float(p)), ZI))
        A("  v_mul_f32 v%d, 0x%x, v%d" % (TP, LOG2E, TP))
        A("  v_mul_f32 v%d, 0x%x, v%d" % (TP + 1, INV2PI, TP + 1))
        A("  v_exp_f32 v%d, v%d" % (TP, TP))
        A("  v_fract_f32 v%d, v%d" % (TP + 1, TP + 1))
        A("  v_cos_f32 v%d, v%d" % (d, TP + 1))
        A("  v_sin_f32 v%d, v%d" % (d + 1, TP + 1))
        A("  s_nop 0")
        A("  v_mul_f32 v%d, v%d, v%d" % (d, d, TP))
        A("  v_mul_f32 v%d, v%d, v%d" % (d + 1, d + 1, TP))
    def store_row(e, region, row, negim):
        ng = "-" if negim else ""
        A("  v_cvt_pk_bf16_f32 v%d, v%d, %sv%d" % (HI, e, ng, e + 1))
        A("  v_lshlrev_b32 v%d, 16, v%d" % (TP, HI))
        A("  v_and_b32 v%d, s64, v%d" % (TP + 1, HI))
        if negim:
            A("  v_pk_add_f32 %s, %s, %s neg_lo:[0,1] neg_hi:[1,1]" % (vr(TP, 2), vr(e, 2), vr(TP, 2)))
        else:
            A("  v_pk_add_f32 %s, %s, %s neg_lo:[0,1] neg_hi:[0,1]" % (vr(TP, 2), vr(e, 2), vr(TP, 2)))
        A("  v_cvt_pk_bf16_f32 v%d, v%d, v%d" % (LO, TP, TP + 1))
        A("  ds_write_b32 v11, v%d offset:%d" % (HI, region + row * 272))
        A("  ds_write_b32 v11, v%d offset:%d" % (LO, region + 4352 + row * 272))
    FR = 32
    ACC = 96
    for i in range(16):
        A("  v_mov_b32 v%d, 0" % (ACC + i))
    for sidx in range(4):
        s = 1 << sidx
        cexp(Wp, s)
        cexp(WW, 16 * s)
        A("  v_mov_b32 v%d, 1.0" % E)
        A("  v_mov_b32 v%d, 0" % (E + 1))
        for j in range(16):
            store_row(E, 8704, j, True)
            if j < 15:
                cmul(E, E, Wp, T)
        if sidx == 0:
            A("  v_mov_b32 v%d, v%d" % (E, C))
            A("  v_mov_b32 v%d, v%d" % (E + 1, C + 1))
            for i in range(8):
                store_row(E, 0, i, False)
                if i < 7:
                    cmul(E, E, WW, T)
            cexp(E, 128 * s)
            cmul(E, E, C, T)
            for i in range(8, 16):
                store_row(E, 0, i, False)
                if i < 15:
                    cmul(E, E, WW, T)
        else:
            cexp(E, 128 * s)
            cmul(E, E, C, T)
            for i in range(9):
                store_row(E, 0, i, False)
                if i < 8:
                    cmul(E, E, WW, T)
        A("  s_waitcnt lgkmcnt(0)")
        for kap in range(4):
            for q, reg in enumerate((0, 4352, 8704, 13056)):
                A("  ds_read_b128 %s, v14 offset:%d" % (vr(FR + 16 * kap + 4 * q, 4), reg + 64 * kap))
        for kap in range(4):
            A("  s_waitcnt lgkmcnt(%d)" % (12 - 4 * kap))
            f = FR + 16 * kap
            a = vr(ACC + 4 * sidx, 4)
            A("  v_mfma_f32_16x16x32_bf16 %s, %s, %s, %s" % (a, vr(f, 4), vr(f + 8, 4), a))
            A("  v_mfma_f32_16x16x32_bf16 %s, %s, %s, %s" % (a, vr(f, 4), vr(f + 12, 4), a))
            A("  v_mfma_f32_16x16x32_bf16 %s, %s, %s, %s" % (a, vr(f + 4, 4), vr(f + 8, 4), a))
    A("  s_nop 7")
    A("  s_nop 1")
    A("  v_lshlrev_b32 v15, 8, v13")
    A("  v_lshl_add_u32 v15, v12, 2, v15")
    A("  v_add_u32 v15, v15, v10")
    for sidx in range(4):
        for r in range(4):
            A("  ds_write_b32 v15, v%d offset:%d" % (ACC + 4 * sidx + r, 1024 * sidx + 64 * r))
    A("  v_cmp_eq_u32 vcc, 32, v8")
    A("  v_add_u32 v16, 4096, v10")
    A("  v_add_u32 v17, 4100, v10")
    A("  s_nop 0")
    A("  v_cndmask_b32 v16, v17, v16, vcc")
    A("  ds_write_b32 v16, v%d" % (ACC + 12))
    A("  s_waitcnt lgkmcnt(0)")
    A("  s_barrier")
    A("  v_lshlrev_b32 v1, 4, v0")
    G0, G1 = 32, 48
    for e in range(16):
        A("  v_add_u32 v2, %d, v1" % e)
        A("  v_cvt_f32_u32 v3, v2")
        A("  v_cvt_pk_bf16_f32 v3, v3, v3")
        A("  v_bfe_u32 v4, v3, 7, 9")
        A("  v_and_b32 v3, 127, v3")
        A("  v_lshl_add_u32 v3, v4, 8, v3")
        A("  v_subrev_u32 v3, %d, v3" % (134 * 256))
        A("  v_cmp_gt_u32 vcc, 256, v2")
        A("  s_nop 1")
        A("  v_cndmask_b32 v3, v3, v2, vcc")
        A("  v_lshlrev_b32 v3, 2, v3")
        A("  ds_read_b32 v%d, v3" % (G0 + e))
        A("  ds_read_b32 v%d, v3 offset:17408" % (G1 + e))
    A("  s_waitcnt lgkmcnt(0)")
    for e in range(16):
        A("  v_add_f32 v%d, v%d, v%d" % (G0 + e, G0 + e, G1 + e))
    for e in range(8):
        A("  v_cvt_pk_bf16_f32 v%d, v%d, v%d" % (64 + e, G0 + 2 * e, G0 + 2 * e + 1))
    A("  s_lshl_b32 s3, s2, 12")
    A("  v_lshlrev_b32 v1, 5, v0")
    A("  v_add_u32 v1, s3, v1")
    A("  buffer_store_dwordx4 v[64:67], v1, s[60:63], 0 offen")
    A("  buffer_store_dwordx4 v[68:71], v1, s[60:63], 0 offen offset:16")
    A("L_k1_end:")
    A("  s_endpgm")

import struct
def f32bits(x):
    return struct.unpack("<I", struct.pack("<f", x))[0]

CS = 4416
COPY0, COPY1 = 0, 8 * CS
PL0 = 2 * 8 * CS
PLSZ = 63 * 144
PL1 = PL0 + PLSZ
RED = PL1 + PLSZ
OUTS = RED + 32768
K2_LDS = OUTS + 2048 * 16 + 32 * 16

def k2():
    A(".globl conv_kernel")
    A(".p2align 8")
    A(".type conv_kernel,@function")
    A("conv_kernel:")
    A("  s_cmp_ge_u32 s2, 256")
    A("  s_cbranch_scc1 L_k2_end")
    load_kernargs()
    A("  s_and_b32 s3, s2, 7")
    A("  s_lshr_b32 s40, s2, 3")
    A("  s_lshr_b32 s41, s40, 4")
    A("  s_and_b32 s40, s40, 15")
    A("  s_lshl_b32 s42, s3, 7")
    A("  s_lshl_b32 s40, s40, 3")
    A("  s_add_u32 s42, s42, s40")
    A("  s_lshl_b32 s3, s41, 22")
    A("  s_add_u32 s44, s%d, s3" % P_WS)
    A("  s_addc_u32 s45, s%d, 0" % (P_WS + 1))
    A("  s_and_b32 s45, s45, 0xffff")
    A("  s_mov_b32 s46, 0x%x" % (4 * MB))
    A("  s_mov_b32 s47, 0x00020000")
    A("  s_add_u32 s48, s%d, 0x%x" % (P_WS, WS_KA))
    A("  s_addc_u32 s49, s%d, 0" % (P_WS + 1))
    A("  s_cmp_eq_u32 s41, 0")
    A("  s_cselect_b32 s48, s48, s%d" % P_SSK)
    A("  s_cselect_b32 s49, s49, s%d" % (P_SSK + 1))
    A("  s_and_b32 s49, s49, 0xffff")
    A("  s_mov_b32 s50, 0x%x" % (4 * MB))
    A("  s_mov_b32 s51, 0x00020000")
    srd(52, P_WS, 4 * MB, WS_Q)
    A("  s_cmp_eq_u32 s41, 0")
    A("  s_cselect_b32 s56, s%d, s%d" % (P_DSK, P_SSD))
    A("  s_cselect_b32 s57, s%d, s%d" % (P_DSK + 1, P_SSD + 1))
    A("  s_and_b32 s57, s57, 0xffff")
    A("  s_mov_b32 s58, 2048")
    A("  s_mov_b32 s59, 0x00020000")
    srd(60, P_OUT, 8 * MB)
    A("  s_mov_b32 s64, 0xffff0000")
    A("  s_mov_b32 s65, 0x0000ffff")
    V_LANE, V_W, V_M, V_KG = 1, 2, 3, 4
    A("  v_and_b32 v1, 63, v0")
    A("  v_lshrrev_b32 v2, 6, v0")
    A("  v_and_b32 v3, 31, v0")
    A("  v_bfe_u32 v4, v0, 5, 1")
    A("  v_cmp_eq_u32 s[66:67], 0, v0")
    VA, VB, VXO, VPW, VCW, VRW, VRR, VEO, VOW = 5, 6, 7, 8, 9, 10, 11, 12, 13
    A("  v_and_b32 v14, 7, v3")
    A("  v_sub_u32 v14, 7, v14")
    A("  v_mul_u32_u24 v5, %d, v14" % CS)
    A("  v_lshrrev_b32 v14, 3, v3")
    A("  v_sub_u32 v14, v4, v14")
    A("  v_lshlrev_b32 v14, 4, v14")
    A("  v_add_u32 v5, v5, v14")
    A("  v_add_u32 v5, %d, v5" % (COPY0 + 16 * 255 - 32 * 30))
    A("  v_lshlrev_b32 v14, 10, v2")
    A("  v_sub_u32 v5, v5, v14")
    A("  v_lshlrev_b32 v14, 3, v2")
    A("  v_sub_u32 v14, v3, v14")
    A("  v_add_u32 v14, 24, v14")
    A("  v_mul_u32_u24 v6, 144, v14")
    A("  v_lshl_add_u32 v6, v4, 4, v6")
    A("  v_add_u32 v6, %d, v6" % PL0)
    A("  v_lshlrev_b32 v7, 4, v0")
    A("  v_lshrrev_b32 v14, 3, v0")
    A("  v_mul_u32_u24 v8, 144, v14")
    A("  v_and_b32 v14, 7, v0")
    A("  v_lshl_add_u32 v8, v14, 4, v8")
    A("  v_add_u32 v8, %d, v8" % (PL0 + 31 * 144))
    A("  v_sub_u32 v9, 255, v0")
    A("  v_lshlrev_b32 v9, 4, v9")
    A("  v_lshlrev_b32 v10, 5, v0")
    A("  v_add_u32 v10, %d, v10" % RED)
    A("  v_lshlrev_b32 v11, 13, v2")
    A("  v_lshl_add_u32 v11, v1, 5, v11")
    A("  v_add_u32 v11, %d, v11" % RED)
    A("  v_lshlrev_b32 v14, 6, v3")
    A("  v_lshl_add_u32 v14, v2, 4, v14")
    A("  v_lshl_add_u32 v14, v4, 2, v14")
    A("  v_lshlrev_b32 v12, 1, v14")
    A("  v_lshlrev_b32 v13, 4, v14")
    A("  v_lshl_add_u32 v13, v3, 4, v13")
    A("  v_add_u32 v13, %d, v13" % OUTS)
    ZR = 16
    for i in range(4):
        A("  v_mov_b32 v%d, 0" % (ZR + i))
    A("  v_cmp_gt_u32 vcc, 128, v0")
    A("  s_and_saveexec_b64 s[68:69], vcc")
    A("  v_lshrrev_b32 v14, 3, v0")
    A("  v_mul_u32_u24 v14, %d, v14" % CS)
    A("  v_and_b32 v15, 7, v0")
    A("  v_lshl_add_u32 v14, v15, 4, v14")
    A("  ds_write_b128 v14, %s offset:%d" % (vr(ZR, 4), 4096))
    A("  s_mov_b64 exec, s[68:69]")
    A("  v_lshlrev_b32 v14, 4, v0")
    A("  v_add_u32 v14, %d, v14" % PL0)
    A("  ds_write_b128 v14, %s offset:%d" % (vr(ZR, 4), 0))
    A("  ds_write_b128 v14, %s offset:%d" % (vr(ZR, 4), PL1 - PL0))
    A("  v_cmp_gt_u32 vcc, %d, v0" % (279 - 256))
    A("  s_and_saveexec_b64 s[68:69], vcc")
    A("  ds_write_b128 v14, %s offset:%d" % (vr(ZR, 4), 4096))
    A("  ds_write_b128 v14, %s offset:%d" % (vr(ZR, 4), PL1 - PL0 + 4096))
    A("  s_mov_b64 exec, s[68:69]")
    CUR, PRV, KPL = 168, 172, 176
    ROT, ROT2, MIX, MIX2 = 180, 188, 196, 204
    EX, EQ, ED = 212, 216, 220
    ACC0 = 64
    AF, BF = 96, 136
    S_CH, S_CNT, S_DC, S_DP = 70, 71, 72, 73
    def issue_loads(chreg_add):
        A("  s_add_u32 s74, s%d, %d" % (S_CH, chreg_add))
        A("  s_lshl_b32 s74, s74, 12")
        A("  v_add_u32 v14, s74, v7")
        A("  v_subrev_u32 v15, 16, v14")
        A("  buffer_load_dwordx4 %s, v14, s[44:47], 0 offen" % vr(CUR, 4))
        A("  buffer_load_dwordx4 %s, v15, s[44:47], 0 offen" % vr(PRV, 4))
        A("  buffer_load_dwordx4 %s, v14, s[48:51], 0 offen" % vr(KPL, 4))
    def build():
        for i in range(4):
            A("  v_cndmask_b32 v%d, v%d, 0, s[66:67]" % (PRV + i, PRV + i))
        W = [PRV + 0, PRV + 1, PRV + 2, PRV + 3, CUR + 0, CUR + 1, CUR + 2, CUR + 3]
        for k in range(7):
            A("  v_alignbit_b32 v%d, v%d, v%d, 16" % (ROT + k, W[7 - k], W[7 - k]))
            A("  v_bfi_b32 v%d, s65, v%d, v%d" % (MIX + k, W[7 - k], W[6 - k]))
        for k in range(1, 7):
            A("  v_mov_b32 v%d, v%d" % (ROT2 + k - 1, ROT + k))
            A("  v_mov_b32 v%d, v%d" % (MIX2 + k - 1, MIX + k))
        A("  ds_write_b128 v8, %s" % vr(KPL, 4))
        for sg in range(4):
            r = ROT + sg if sg % 2 == 0 else ROT2 + sg - 1
            m = MIX + sg if sg % 2 == 0 else MIX2 + sg - 1
            A("  ds_write_b128 v9, %s offset:%d" % (vr(r, 4), (2 * sg) * CS))
            A("  ds_write_b128 v9, %s offset:%d" % (vr(m, 4), (2 * sg + 1) * CS))
    A("  s_mov_b32 s%d, s42" % S_CH)
    issue_loads(0)
    A("  s_waitcnt vmcnt(0)")
    build()
    A("  v_add_u32 v9, %d, v9" % (COPY1 - COPY0))
    A("  v_add_u32 v8, %d, v8" % (PL1 - PL0))
    A("  s_mov_b32 s%d, %d" % (S_DC, COPY1 - COPY0))
    A("  s_mov_b32 s%d, %d" % (S_DP, PL1 - PL0))
    A("  s_mov_b32 s%d, 0" % S_CNT)
    A("  s_waitcnt lgkmcnt(0)")
    A("  s_barrier")
    A("L_k2_loop:")
    issue_loads(1)
    A("  s_lshl_b32 s74, s%d, 12" % S_CH)
    A("  v_add_u32 v14, s74, v12")
    A("  buffer_load_dwordx2 %s, v14, s[44:47], 0 offen" % vr(EX, 2))
    A("  buffer_load_dwordx2 %s, v14, s[44:47], 0 offen offset:16" % vr(EX + 2, 2))
    A("  buffer_load_dwordx2 %s, v14, s[52:55], 0 offen" % vr(EQ, 2))
    A("  buffer_load_dwordx2 %s, v14, s[52:55], 0 offen offset:16" % vr(EQ + 2, 2))
    A("  s_lshl_b32 s74, s%d, 1" % S_CH)
    A("  v_mov_b32 v14, s74")
    A("  buffer_load_ushort v%d, v14, s[56:59], 0 offen" % ED)
    for i in range(32):
        A("  v_mov_b32 v%d, 0" % (ACC0 + i))
    def a_reg(crel):
        return AF + 4 * ((crel + 3) % 10)
    def a_off(crel):
        return 32 * (30 - crel)
    def b_reg(dd, ks):
        return BF + 16 * (dd % 2) + 4 * ks
    def b_off(dd, ks):
        return (7 - dd) * 144 + 32 * ks
    for c in range(-3, 3):
        A("  ds_read_b128 %s, v5 offset:%d" % (vr(a_reg(c), 4), a_off(c)))
    for ks in range(4):
        A("  ds_read_b128 %s, v6 offset:%d" % (vr(b_reg(0, ks), 4), b_off(0, ks)))
    for dd in range(8):
        A("  s_waitcnt lgkmcnt(0)")
        pf = []
        if dd < 7:
            for c in range(4 * dd + 3, 4 * dd + 7):
                pf.append("  ds_read_b128 %s, v5 offset:%d" % (vr(a_reg(c), 4), a_off(c)))
            for ks in range(4):
                pf.append("  ds_read_b128 %s, v6 offset:%d" % (vr(b_reg(dd + 1, ks), 4), b_off(dd + 1, ks)))
        k = 0
        for ks in range(4):
            for mt in range(2):
                c = 4 * dd + 2 * mt - ks
                acc = vr(ACC0 + 16 * mt, 16)
                A("  v_mfma_f32_32x32x16_bf16 %s, %s, %s, %s" % (acc, vr(a_reg(c), 4), vr(b_reg(dd, ks), 4), acc))
                for _ in range(2):
                    if k < len(pf):
                        A(pf[k]); k += 1
    A("  s_nop 7")
    A("  s_nop 3")
    for Q in range(4):
        A("  ds_write_b128 v10, %s offset:%d" % (vr(ACC0 + 8 * Q, 4), Q * 8192))
        A("  ds_write_b128 v10, %s offset:%d" % (vr(ACC0 + 8 * Q + 4, 4), Q * 8192 + 16))
    A("  s_waitcnt vmcnt(5)")
    build()
    A("  s_waitcnt lgkmcnt(0)")
    A("  s_barrier")
    SM = 96
    for src in range(4):
        A("  ds_read_b128 %s, v11 offset:%d" % (vr(SM + 8 * src, 4), src * 2048))
        A("  ds_read_b128 %s, v11 offset:%d" % (vr(SM + 8 * src + 4, 4), src * 2048 + 16))
    A("  s_waitcnt vmcnt(0)")
    A("  v_lshlrev_b32 v%d, 16, v%d" % (ED, ED))
    A("  v_mov_b32 v%d, v%d" % (ED + 1, ED))
    A("  s_cmp_eq_u32 s41, 0")
    A("  s_cbranch_scc0 L_k2_hasq")
    for i in range(4):
        A("  v_mov_b32 v%d, 0x3f803f80" % (EQ + i))
    A("L_k2_hasq:")
    A("  s_waitcnt lgkmcnt(0)")
    for i in range(0, 8, 2):
        A("  v_pk_add_f32 %s, %s, %s" % (vr(SM + i, 2), vr(SM + i, 2), vr(SM + 8 + i, 2)))
        A("  v_pk_add_f32 %s, %s, %s" % (vr(SM + 16 + i, 2), vr(SM + 16 + i, 2), vr(SM + 24 + i, 2)))
    for i in range(0, 8, 2):
        A("  v_pk_add_f32 %s, %s, %s" % (vr(SM + i, 2), vr(SM + i, 2), vr(SM + 16 + i, 2)))
    T1, T2, T3 = 128, 130, 132
    for i in range(4):
        y = SM + 2 * i
        A("  v_cvt_pk_bf16_f32 v%d, v%d, v%d" % (T3, y, y + 1))
        A("  v_lshlrev_b32 v%d, 16, v%d" % (y, T3))
        A("  v_and_b32 v%d, s64, v%d" % (y + 1, T3))
        A("  v_lshlrev_b32 v%d, 16, v%d" % (T1, EX + i))
        A("  v_and_b32 v%d, s64, v%d" % (T1 + 1, EX + i))
        A("  v_pk_mul_f32 %s, %s, %s" % (vr(T1, 2), vr(T1, 2), vr(ED, 2)))
        A("  v_cvt_pk_bf16_f32 v%d, v%d, v%d" % (T3, T1, T1 + 1))
        A("  v_lshlrev_b32 v%d, 16, v%d" % (T1, T3))
        A("  v_and_b32 v%d, s64, v%d" % (T1 + 1, T3))
        A("  v_pk_add_f32 %s, %s, %s" % (vr(y, 2), vr(y, 2), vr(T1, 2)))
        A("  v_cvt_pk_bf16_f32 v%d, v%d, v%d" % (T3, y, y + 1))
        A("  v_lshlrev_b32 v%d, 16, v%d" % (y, T3))
        A("  v_and_b32 v%d, s64, v%d" % (y + 1, T3))
        A("  v_lshlrev_b32 v%d, 16, v%d" % (T1, EQ + i))
        A("  v_and_b32 v%d, s64, v%d" % (T1 + 1, EQ + i))
        A("  v_pk_mul_f32 %s, %s, %s" % (vr(y, 2), vr(y, 2), vr(T1, 2)))
        A("  v_cvt_pk_bf16_f32 v%d, v%d, v%d" % (T3, y, y + 1))
        tofs = (8 * (i // 2) + 2 * (i % 2)) * 16
        A("  ds_write_b16 v13, v%d offset:%d" % (T3, tofs))
        A("  ds_write_b16_d16_hi v13, v%d offset:%d" % (T3, tofs + 16))
        A("  s_nop 0")
    A("  v_add_u32 v5, s%d, v5" % S_DC)
    A("  v_add_u32 v6, s%d, v6" % S_DP)
    A("  v_subrev_u32 v9, s%d, v9" % S_DC)
    A("  v_subrev_u32 v8, s%d, v8" % S_DP)
    A("  s_sub_u32 s%d, 0, s%d" % (S_DC, S_DC))
    A("  s_sub_u32 s%d, 0, s%d" % (S_DP, S_DP))
    A("  v_add_u32 v13, 2, v13")
    A("  s_add_u32 s%d, s%d, 1" % (S_CH, S_CH))
    A("  s_add_u32 s%d, s%d, 1" % (S_CNT, S_CNT))
    A("  s_waitcnt lgkmcnt(0)")
    A("  s_barrier")
    A("  s_cmp_lt_u32 s%d, 8" % S_CNT)
    A("  s_cbranch_scc1 L_k2_loop")
    A("  v_lshlrev_b32 v14, 4, v0")
    A("  v_lshrrev_b32 v15, 6, v0")
    A("  v_lshl_add_u32 v14, v15, 4, v14")
    A("  v_add_u32 v14, %d, v14" % OUTS)
    for i in range(8):
        A("  ds_read_b128 %s, v14 offset:%d" % (vr(96 + 4 * i, 4), i * (256 * 16 + 64)))
    A("  s_lshl_b32 s3, s41, 11")
    A("  s_lshl_b32 s74, s42, 1")
    A("  s_add_u32 s3, s3, s74")
    A("  v_lshlrev_b32 v15, 12, v0")
    A("  v_add_u32 v15, s3, v15")
    for i in range(8):
        A("  s_waitcnt lgkmcnt(%d)" % (7 - i))
        A("  v_add_u32 v14, 0x%x, v15" % (i * 256 * 4096))
        A("  buffer_store_dwordx4 %s, v14, s[60:63], 0 offen" % vr(96 + 4 * i, 4))
    A("L_k2_end:")
    A("  s_endpgm")

def kd(name, vgpr, sgpr=102):
    A(".p2align 6")
    A(".amdhsa_kernel %s" % name)
    A("  .amdhsa_next_free_vgpr %d" % vgpr)
    A("  .amdhsa_next_free_sgpr %d" % sgpr)
    A("  .amdhsa_accum_offset %d" % ((vgpr + 3) // 4 * 4))
    A("  .amdhsa_group_segment_fixed_size 0")
    A("  .amdhsa_kernarg_size 128")
    A("  .amdhsa_user_sgpr_count 2")
    A("  .amdhsa_user_sgpr_kernarg_segment_ptr 1")
    A("  .amdhsa_system_sgpr_workgroup_id_x 1")
    A("  .amdhsa_float_denorm_mode_32 3")
    A(".end_amdhsa_kernel")

def main():
    ref = open(OUT + ".ref").read().split("\n")
    for ln in ref:
        if ln.startswith("; Override") or ln.startswith("; grid=") or ln.startswith("; @launch"):
            continue
        if ln.startswith(";"):
            A(ln)
        else:
            break
    A("; @launch kernel=prep_kernel grid=(2560,1,1) block=(128,1,1) lds=%d" % K1_LDS)
    A("; @launch kernel=conv_kernel grid=(256,1,1) block=(256,1,1) lds=%d" % K2_LDS)
    A('.amdgcn_target "amdgcn-amd-amdhsa--gfx950"')
    A(".text")
    k1()
    k2()
    A('.section .rodata,"a"')
    kd("prep_kernel", 128)
    kd("conv_kernel", 224)
    open(OUT, "w").write("\n".join(L) + "\n")
    print("wrote", OUT, len(L), "lines; K2_LDS", K2_LDS)

main()
```

```python
import sys, os
FL = set(os.environ.get("FL","").split(","))

NAME = "concat_heads__ssm_conv_s4d__ssm_conv_h3__prompt"
OUT = "cdna_kernels/%s.s" % NAME
OUTW = os.environ.get("OUTW", OUT)

L = []
def A(s=""):
    L.append(s)

def vr(a, n=1):
    return "v%d" % a if n == 1 else "v[%d:%d]" % (a, a + n - 1)
def sr(a, n=1):
    return "s%d" % a if n == 1 else "s[%d:%d]" % (a, a + n - 1)

LOG2E = 0x3fb8aa3b
INV2PI = 0x3e22f983
MB = 1 << 20
WS_U, WS_KV, WS_Q, WS_KA = 0, 4 * MB, 8 * MB, 12 * MB

P_U, P_LAR, P_AIM, P_CR, P_CI, P_LDT, P_DSK, P_Q, P_K, P_V, P_SH, P_SSK, P_SSD, P_OUT, P_DBG, P_WS = [8 + 2 * i for i in range(16)]

def hstamp():
    if "stamph" in FL:
        FL.add("stamp"); stamp(); FL.discard("stamp")

def stamp():
    if "stamp" not in FL:
        return
    A("  s_memtime s[80:81]")
    A("  s_waitcnt lgkmcnt(0)")
    A("  s_mov_b32 m0, s82")
    A("  s_nop 0")
    A("  v_writelane_b32 v230, s80, m0")
    A("  s_add_u32 s82, s82, 1")

def stamp_init():
    if "stamp" not in FL and "stamph" not in FL:
        return
    A("  s_mov_b32 s82, 0")
    A("  v_mov_b32 v230, 0")

def stamp_flush(lbl):
    if "stamp" not in FL:
        return
    A("  s_cmp_lg_u32 s2, 0")
    A("  s_cbranch_scc1 %s" % lbl)
    srd(84, P_DBG, 256)
    A("  v_lshlrev_b32 v231, 2, v0")
    A("  buffer_store_dword v230, v231, s[84:87], 0 offen")

def load_kernargs():
    A("  s_load_dwordx16 s[8:23], s[0:1], 0")
    A("  s_load_dwordx16 s[24:39], s[0:1], 64")
    A("  s_waitcnt lgkmcnt(0)")

def srd(dst, ptr, nbytes, add=0):
    if add:
        A("  s_add_u32 s%d, s%d, 0x%x" % (dst, ptr, add))
        A("  s_addc_u32 s%d, s%d, 0" % (dst + 1, ptr + 1))
        A("  s_and_b32 s%d, s%d, 0xffff" % (dst + 1, dst + 1))
    else:
        A("  s_mov_b32 s%d, s%d" % (dst, ptr))
        A("  s_and_b32 s%d, s%d, 0xffff" % (dst + 1, ptr + 1))
    A("  s_mov_b32 s%d, 0x%x" % (dst + 2, nbytes))
    A("  s_mov_b32 s%d, 0x00020000" % (dst + 3))

def cmul(d, e, w, t):
    A("  v_pk_mul_f32 %s, %s, %s op_sel:[1,1] op_sel_hi:[1,0]" % (vr(t, 2), vr(e, 2), vr(w, 2)))
    A("  v_pk_fma_f32 %s, %s, %s, %s op_sel:[0,0,0] op_sel_hi:[0,1,1] neg_lo:[0,0,1]" % (vr(d, 2), vr(e, 2), vr(w, 2), vr(t, 2)))

K1_LDS = 2 * 32 * 528
def k1():
    A(".globl prep_kernel")
    A(".p2align 8")
    A(".type prep_kernel,@function")
    A("prep_kernel:")
    load_kernargs()
    A("  s_cmp_lt_u32 s2, 1024")
    A("  s_cbranch_scc1 %s" % ("L_k1_end" if "nokgen" in FL else "L_kgen"))
    if "notr" in FL:
        A("  s_branch L_k1_end")
    A("  s_cmp_lt_u32 s2, 2560")
    A("  s_cbranch_scc0 L_k1_end")
    A("  s_sub_u32 s3, s2, 1024")
    A("  s_lshr_b32 s40, s3, 9")
    A("  s_and_b32 s41, s3, 511")
    A("  s_lshr_b32 s42, s41, 4")
    A("  s_and_b32 s43, s41, 15")
    A("  s_mov_b32 s60, 0xffff0000")
    A("  s_mov_b32 s61, 0x05040100")
    A("  s_mov_b32 s62, 0x07060302")
    A("  s_lshl_b32 s3, s40, 22")
    A("  s_add_u32 s44, s%d, s3" % P_WS)
    A("  s_addc_u32 s45, s%d, 0" % (P_WS + 1))
    A("  s_and_b32 s45, s45, 0xffff")
    A("  s_mov_b32 s46, 0x%x" % (4 * MB))
    A("  s_mov_b32 s47, 0x00020000")
    A("  v_lshrrev_b32 v1, 3, v0")
    A("  v_and_b32 v2, 7, v0")
    A("  s_lshl_b32 s3, s42, 17")
    A("  s_lshl_b32 s48, s43, 7")
    A("  s_add_u32 s3, s3, s48")
    A("  v_lshlrev_b32 v3, 13, v1")
    A("  v_lshl_add_u32 v3, v2, 4, v3")
    A("  v_add_u32 v3, s3, v3")
    R0 = 16
    A("  s_cmp_eq_u32 s40, 1")
    A("  s_cbranch_scc1 L_tr_kv")
    A("  s_cmp_eq_u32 s40, 0")
    A("  s_cselect_b32 s48, s%d, s%d" % (P_U, P_Q))
    A("  s_cselect_b32 s49, s%d, s%d" % (P_U + 1, P_Q + 1))
    A("  s_and_b32 s49, s49, 0xffff")
    A("  s_mov_b32 s50, 0x%x" % (4 * MB))
    A("  s_mov_b32 s51, 0x00020000")
    for i in range(4):
        A("  v_add_u32 v4, %d, v3" % (2048 * i))
        A("  buffer_load_dwordx4 %s, v4, s[48:51], 0 offen" % vr(R0 + 4 * i, 4))
    A("  s_waitcnt vmcnt(0)")
    A("  s_branch L_tr_store")
    A("L_tr_kv:")
    srd(48, P_K, 4 * MB)
    srd(52, P_V, 4 * MB)
    srd(56, P_SH, 8192)
    KR, VR_, WR = 32, 60, 76
    for i in range(7):
        off = 2048 * (i - 3)
        if off < 0:
            A("  v_subrev_u32 v4, %d, v3" % (-off))
        else:
            A("  v_add_u32 v4, %d, v3" % off)
        A("  buffer_load_dwordx4 %s, v4, s[48:51], 0 offen" % vr(KR + 4 * i, 4))
    for i in range(4):
        A("  v_add_u32 v4, %d, v3" % (2048 * i))
        A("  buffer_load_dwordx4 %s, v4, s[52:55], 0 offen" % vr(VR_ + 4 * i, 4))
    A("  s_lshl_b32 s3, s43, 9")
    A("  v_lshlrev_b32 v5, 6, v2")
    A("  v_add_u32 v5, s3, v5")
    for i in range(4):
        A("  buffer_load_dwordx4 %s, v5, s[56:59], 0 offen offset:%d" % (vr(WR + 4 * i, 4), 16 * i))
    A("  s_waitcnt vmcnt(0)")
    KF, WF, VF, AC, PT, TM = 96, 112, 120, 122, 124, 126
    def rnd(p):
        A("  v_cvt_pk_bf16_f32 v%d, v%d, v%d" % (TM, p, p + 1))
        A("  v_lshlrev_b32 v%d, 16, v%d" % (p, TM))
        A("  v_and_b32 v%d, s60, v%d" % (p + 1, TM))
    for d in range(4):
        for h in range(2):
            e = 2 * d + h
            A("  v_lshlrev_b32 v%d, 16, v%d" % (WF + 0 + h, WR + 2 * e))
            A("  v_and_b32 v%d, s60, v%d" % (WF + 2 + h, WR + 2 * e))
            A("  v_lshlrev_b32 v%d, 16, v%d" % (WF + 4 + h, WR + 2 * e + 1))
            A("  v_and_b32 v%d, s60, v%d" % (WF + 6 + h, WR + 2 * e + 1))
        for i in range(7):
            A("  v_lshlrev_b32 v%d, 16, v%d" % (KF + 2 * i, KR + 4 * i + d))
            A("  v_and_b32 v%d, s60, v%d" % (KF + 2 * i + 1, KR + 4 * i + d))
        for rho in range(4):
            A("  v_pk_mul_f32 %s, %s, %s" % (vr(AC, 2), vr(KF + 2 * rho, 2), vr(WF + 6, 2)))
            rnd(AC)
            for a in (2, 1, 0):
                A("  v_pk_mul_f32 %s, %s, %s" % (vr(PT, 2), vr(KF + 2 * (rho + 3 - a), 2), vr(WF + 2 * a, 2)))
                rnd(PT)
                A("  v_pk_add_f32 %s, %s, %s" % (vr(AC, 2), vr(AC, 2), vr(PT, 2)))
                rnd(AC)
            A("  v_lshlrev_b32 v%d, 16, v%d" % (VF, VR_ + 4 * rho + d))
            A("  v_and_b32 v%d, s60, v%d" % (VF + 1, VR_ + 4 * rho + d))
            A("  v_pk_mul_f32 %s, %s, %s" % (vr(AC, 2), vr(AC, 2), vr(VF, 2)))
            A("  v_cvt_pk_bf16_f32 v%d, v%d, v%d" % (R0 + 4 * rho + d, AC, AC + 1))
    A("L_tr_store:")
    A("  v_mul_u32_u24 v6, %d, v2" % (8 * 144))
    A("  v_lshl_add_u32 v6, v1, 3, v6")
    T0 = 8
    for d in range(4):
        A("  v_perm_b32 v%d, v%d, v%d, s61" % (T0, R0 + 4 + d, R0 + d))
        A("  v_perm_b32 v%d, v%d, v%d, s61" % (T0 + 1, R0 + 12 + d, R0 + 8 + d))
        A("  v_perm_b32 v%d, v%d, v%d, s62" % (T0 + 2, R0 + 4 + d, R0 + d))
        A("  v_perm_b32 v%d, v%d, v%d, s62" % (T0 + 3, R0 + 12 + d, R0 + 8 + d))
        A("  ds_write_b64 v6, %s offset:%d" % (vr(T0, 2), 144 * (2 * d)))
        A("  ds_write_b64 v6, %s offset:%d" % (vr(T0 + 2, 2), 144 * (2 * d + 1)))
        A("  s_nop 1")
    A("  s_waitcnt lgkmcnt(0)")
    A("  s_barrier")
    A("  v_lshrrev_b32 v1, 3, v0")
    A("  v_and_b32 v2, 7, v0")
    A("  v_mul_u32_u24 v6, 144, v1")
    A("  v_lshl_add_u32 v6, v2, 4, v6")
    for it in range(4):
        A("  ds_read_b128 %s, v6 offset:%d" % (vr(R0 + 4 * it, 4), 16 * 144 * it))
    A("  s_lshl_b32 s3, s43, 18")
    A("  s_lshl_b32 s48, s42, 7")
    A("  s_add_u32 s3, s3, s48")
    A("  v_lshlrev_b32 v7, 12, v1")
    A("  v_lshl_add_u32 v7, v2, 4, v7")
    A("  v_add_u32 v7, s3, v7")
    for it in range(4):
        A("  s_waitcnt lgkmcnt(%d)" % (3 - it))
        A("  v_add_u32 v4, 0x%x, v7" % (16 * 4096 * it))
        A("  buffer_store_dwordx4 %s, v4, s[44:47], 0 offen" % vr(R0 + 4 * it, 4))
    A("  s_branch L_k1_end")

    A("L_kgen:")
    if "stamp1" in FL:
        FL.add("stamp")
        stamp_init(); stamp()
    srd(40, P_LAR, 262144)
    srd(44, P_AIM, 262144)
    srd(48, P_CR, 262144)
    srd(52, P_CI, 262144)
    srd(56, P_LDT, 2048)
    srd(60, P_WS, 4 * MB, WS_KA)
    A("  s_mov_b32 s64, 0xffff0000")
    A("  s_lshl_b32 s3, s2, 8")
    A("  v_lshlrev_b32 v1, 1, v0")
    A("  v_add_u32 v1, s3, v1")
    A("  s_lshl_b32 s3, s2, 1")
    A("  v_mov_b32 v2, s3")
    A("  buffer_load_ushort v3, v1, s[40:43], 0 offen")
    A("  buffer_load_ushort v4, v1, s[44:47], 0 offen")
    A("  buffer_load_ushort v5, v1, s[48:51], 0 offen")
    A("  buffer_load_ushort v6, v1, s[52:55], 0 offen")
    A("  buffer_load_ushort v7, v2, s[56:59], 0 offen")
    WB = 32 * 528
    A("  v_and_b32 v8, 63, v0")
    A("  v_lshrrev_b32 v9, 6, v0")
    A("  v_mul_u32_u24 v10, %d, v9" % WB)
    A("  v_lshl_add_u32 v11, v8, 3, v10")
    A("  v_and_b32 v12, 15, v8")
    A("  v_lshrrev_b32 v13, 4, v8")
    A("  v_mul_u32_u24 v14, 528, v12")
    A("  v_lshl_add_u32 v14, v13, 4, v14")
    A("  v_add_u32 v14, v14, v10")
    A("  s_waitcnt vmcnt(0)")
    for r in (3, 4, 5, 6, 7):
        A("  v_lshlrev_b32 v%d, 16, v%d" % (r, r))
    A("  v_mul_f32 v7, 0x%x, v7" % LOG2E)
    A("  v_mul_f32 v3, 0x%x, v3" % LOG2E)
    A("  v_exp_f32 v7, v7")
    A("  v_exp_f32 v3, v3")
    A("  s_nop 0")
    A("  v_cvt_pk_bf16_f32 v15, v7, v3")
    A("  v_lshlrev_b32 v7, 16, v15")
    A("  v_and_b32 v3, s64, v15")
    ZR, ZI, C = 16, 17, 18
    A("  v_mul_f32 v%d, v3, v7" % ZR)
    A("  v_sub_f32 v%d, 0, v%d" % (ZR, ZR))
    A("  v_mul_f32 v%d, v4, v7" % ZI)
    A("  v_mul_f32 v%d, v5, v7" % C)
    A("  v_mul_f32 v%d, v6, v7" % (C + 1))
    A("  v_add_f32 v%d, v%d, v%d" % (C, C, C))
    A("  v_add_f32 v%d, v%d, v%d" % (C + 1, C + 1, C + 1))
    def cexp(d, p, tp, conj=False):
        o = []
        o.append("  v_mul_f32 v%d, 0x%08x, v%d" % (tp, f32bits(float(p)), ZR))
        o.append("  v_mul_f32 v%d, 0x%08x, v%d" % (tp + 1, f32bits(float(-p if conj else p)), ZI))
        o.append("  v_mul_f32 v%d, 0x%x, v%d" % (tp, LOG2E, tp))
        o.append("  v_mul_f32 v%d, 0x%x, v%d" % (tp + 1, INV2PI, tp + 1))
        o.append("  v_exp_f32 v%d, v%d" % (tp, tp))
        o.append("  v_fract_f32 v%d, v%d" % (tp + 1, tp + 1))
        o.append("  v_cos_f32 v%d, v%d" % (d, tp + 1))
        o.append("  v_sin_f32 v%d, v%d" % (d + 1, tp + 1))
        o.append("  s_nop 0")
        o.append("  v_mul_f32 v%d, v%d, v%d" % (d, d, tp))
        o.append("  v_mul_f32 v%d, v%d, v%d" % (d + 1, d + 1, tp))
        return o
    def cm(d, e, w, t):
        return ["  v_pk_mul_f32 %s, %s, %s op_sel:[1,1] op_sel_hi:[1,0]" % (vr(t, 2), vr(e, 2), vr(w, 2)),
                "  v_pk_fma_f32 %s, %s, %s, %s op_sel:[0,0,0] op_sel_hi:[0,1,1] neg_lo:[0,0,1]" % (vr(d, 2), vr(e, 2), vr(w, 2), vr(t, 2))]
    def wr(e, row):
        return ["  ds_write_b64 v11, %s offset:%d" % (vr(e, 2), row * 528)]
    if "stamp1" in FL: stamp()
    FR = 40
    ACC = 104
    for i in range(32):
        A("  v_mov_b32 v%d, 0" % (ACC + i))
    BW, BE, BT, BTP = 20, (22, 24), 26, 28
    AW, AE, AT, ATP = 30, (32, 34), 36, 38
    for sidx in range(4):
        s_ = 1 << sidx
        cb = cexp(BW, s_, BTP, conj=True)
        cb += ["  v_mov_b32 v%d, 1.0" % BE[0], "  v_mov_b32 v%d, 0" % (BE[0] + 1)]
        for j in range(16):
            cb += wr(BE[j % 2], 16 + j)
            if j < 15:
                cb += cm(BE[(j + 1) % 2], BE[j % 2], BW, BT)
        ca = cexp(AW, 16 * s_, ATP)
        if sidx == 0:
            ca += wr(C, 0)
            ca += cm(AE[1], C, AW, AT)
            for i in range(1, 8):
                ca += wr(AE[i % 2], i)
                if i < 7:
                    ca += cm(AE[(i + 1) % 2], AE[i % 2], AW, AT)
            ca += cexp(AE[1], 128 * s_, ATP)
            ca += cm(AE[0], AE[1], C, AT)
            for i in range(8, 16):
                ca += wr(AE[i % 2], i)
                if i < 15:
                    ca += cm(AE[(i + 1) % 2], AE[i % 2], AW, AT)
        else:
            ca += cexp(AE[1], 128 * s_, ATP)
            ca += cm(AE[0], AE[1], C, AT)
            for i in range(9):
                ca += wr(AE[i % 2], i)
                if i < 8:
                    ca += cm(AE[(i + 1) % 2], AE[i % 2], AW, AT)
        i = j = 0
        while i < len(ca) or j < len(cb):
            if i < len(ca):
                A(ca[i]); i += 1
            if j < len(cb):
                A(cb[j]); j += 1
        A("  s_waitcnt lgkmcnt(0)")
        if "stamp1" in FL: stamp()
        for blk in range(8):
            A("  ds_read_b128 %s, v14 offset:%d" % (vr(FR + 8 * blk, 4), 64 * blk))
            A("  ds_read_b128 %s, v14 offset:%d" % (vr(FR + 8 * blk + 4, 4), 16 * 528 + 64 * blk))
        for blk in range(8):
            A("  s_waitcnt lgkmcnt(%d)" % (14 - 2 * blk))
            for i in range(4):
                a_ = vr(ACC + 8 * sidx + 4 * (i % 2), 4)
                A("  v_mfma_f32_16x16x4_f32 %s, v%d, v%d, %s" % (a_, FR + 8 * blk + i, FR + 8 * blk + 4 + i, a_))
        if "stamp1" in FL: stamp()
    A("  s_nop 7")
    A("  s_nop 3")
    for sidx in range(4):
        for r in range(4):
            A("  v_add_f32 v%d, v%d, v%d" % (ACC + 8 * sidx + r, ACC + 8 * sidx + r, ACC + 8 * sidx + 4 + r))
    A("  v_lshlrev_b32 v15, 8, v13")
    A("  v_lshl_add_u32 v15, v12, 2, v15")
    A("  v_add_u32 v15, v15, v10")
    for sidx in range(4):
        for r in range(4):
            A("  ds_write_b32 v15, v%d offset:%d" % (ACC + 8 * sidx + r, 1024 * sidx + 64 * r))
    A("  v_cmp_eq_u32 vcc, 32, v8")
    A("  v_add_u32 v16, 4096, v10")
    A("  v_add_u32 v17, 4100, v10")
    A("  s_nop 0")
    A("  v_cndmask_b32 v16, v17, v16, vcc")
    A("  ds_write_b32 v16, v%d" % (ACC + 24))
    A("  s_waitcnt lgkmcnt(0)")
    A("  s_barrier")
    A("  v_lshlrev_b32 v1, 4, v0")
    G0, G1 = 32, 48
    for e in range(16):
        A("  v_add_u32 v2, %d, v1" % e)
        A("  v_cvt_f32_u32 v3, v2")
        A("  v_cvt_pk_bf16_f32 v3, v3, v3")
        A("  v_bfe_u32 v4, v3, 7, 9")
        A("  v_and_b32 v3, 127, v3")
        A("  v_lshl_add_u32 v3, v4, 8, v3")
        A("  v_subrev_u32 v3, %d, v3" % (134 * 256))
        A("  v_cmp_gt_u32 vcc, 256, v2")
        A("  s_nop 1")
        A("  v_cndmask_b32 v3, v3, v2, vcc")
        A("  v_lshlrev_b32 v3, 2, v3")
        A("  ds_read_b32 v%d, v3" % (G0 + e))
        A("  ds_read_b32 v%d, v3 offset:%d" % (G1 + e, WB))
    A("  s_waitcnt lgkmcnt(0)")
    for e in range(16):
        A("  v_add_f32 v%d, v%d, v%d" % (G0 + e, G0 + e, G1 + e))
    for e in range(8):
        A("  v_cvt_pk_bf16_f32 v%d, v%d, v%d" % (64 + e, G0 + 2 * e, G0 + 2 * e + 1))
    A("  s_lshl_b32 s3, s2, 12")
    A("  v_lshlrev_b32 v1, 5, v0")
    A("  v_add_u32 v1, s3, v1")
    A("  buffer_store_dwordx4 v[64:67], v1, s[60:63], 0 offen")
    A("  buffer_store_dwordx4 v[68:71], v1, s[60:63], 0 offen offset:16")
    if "stamp1" in FL:
        A("  s_waitcnt vmcnt(0)")
        stamp()
        stamp_flush("L_k1_end")
        FL.discard("stamp")
    A("L_k1_end:")
    A("  s_endpgm")

import struct
def f32bits(x):
    return struct.unpack("<I", struct.pack("<f", x))[0]

CS = 4416
COPY0, COPY1 = 0, 8 * CS
PL0 = 2 * 8 * CS
PLSZ = 63 * 144
PL1 = PL0 + PLSZ
RED = PL1 + PLSZ
OUTS = RED + 32768
K2_LDS = OUTS + 2048 * 16 + 32 * 16

MDD = int(os.environ.get("MDD", "3"))
def k2():
    A(".globl conv_kernel")
    A(".p2align 8")
    A(".type conv_kernel,@function")
    A("conv_kernel:")
    A("  s_cmp_ge_u32 s2, 256")
    A("  s_cbranch_scc1 L_k2_end")
    load_kernargs()
    stamp_init(); stamp()
    A("  s_and_b32 s3, s2, 7")
    A("  s_lshr_b32 s40, s2, 3")
    A("  s_lshr_b32 s41, s40, 4")
    A("  s_and_b32 s40, s40, 15")
    A("  s_lshl_b32 s42, s3, 7")
    A("  s_lshl_b32 s40, s40, 3")
    A("  s_add_u32 s42, s42, s40")
    A("  s_lshl_b32 s3, s41, 22")
    A("  s_add_u32 s44, s%d, s3" % P_WS)
    A("  s_addc_u32 s45, s%d, 0" % (P_WS + 1))
    A("  s_and_b32 s45, s45, 0xffff")
    A("  s_mov_b32 s46, 0x%x" % (4 * MB))
    A("  s_mov_b32 s47, 0x00020000")
    A("  s_add_u32 s48, s%d, 0x%x" % (P_WS, WS_KA))
    A("  s_addc_u32 s49, s%d, 0" % (P_WS + 1))
    A("  s_cmp_eq_u32 s41, 0")
    A("  s_cselect_b32 s48, s48, s%d" % P_SSK)
    A("  s_cselect_b32 s49, s49, s%d" % (P_SSK + 1))
    A("  s_and_b32 s49, s49, 0xffff")
    A("  s_mov_b32 s50, 0x%x" % (4 * MB))
    A("  s_mov_b32 s51, 0x00020000")
    srd(52, P_WS, 4 * MB, WS_Q)
    A("  s_cmp_eq_u32 s41, 0")
    A("  s_cselect_b32 s56, s%d, s%d" % (P_DSK, P_SSD))
    A("  s_cselect_b32 s57, s%d, s%d" % (P_DSK + 1, P_SSD + 1))
    A("  s_and_b32 s57, s57, 0xffff")
    A("  s_mov_b32 s58, 2048")
    A("  s_mov_b32 s59, 0x00020000")
    srd(60, P_OUT, 8 * MB)
    A("  s_mov_b32 s64, 0xffff0000")
    A("  s_mov_b32 s65, 0x0000ffff")
    S_CH, S_CNT, S_DC, S_DP = 70, 71, 72, 73
    A("  s_mov_b32 s%d, s42" % S_CH)
    A("  s_mov_b32 s%d, 0" % S_CNT)
    A("  s_mov_b32 s%d, %d" % (S_DC, COPY1 - COPY0))
    A("  s_mov_b32 s%d, %d" % (S_DP, PL1 - PL0))
    A("  v_mov_b32 v229, v0")
    A("  v_lshrrev_b32 v2, 6, v0")
    A("  s_nop 0")
    A("  v_readfirstlane_b32 s75, v2")
    A("  v_and_b32 v0, 255, v0")
    A("  v_and_b32 v1, 63, v0")
    A("  v_bfe_u32 v2, v0, 6, 2")
    A("  v_and_b32 v3, 31, v0")
    A("  v_bfe_u32 v4, v0, 5, 1")
    A("  s_cmp_ge_u32 s75, 4")
    A("  s_cbranch_scc1 L_k2_helper")
    ACC0, AF, BF = 32, 96, 160
    A("  v_and_b32 v14, 7, v3")
    A("  v_sub_u32 v14, 7, v14")
    A("  v_mul_u32_u24 v5, %d, v14" % CS)
    A("  v_lshrrev_b32 v14, 3, v3")
    A("  v_sub_u32 v14, v4, v14")
    A("  v_lshlrev_b32 v14, 4, v14")
    A("  v_add_u32 v5, v5, v14")
    A("  v_add_u32 v5, %d, v5" % (COPY0 + 16 * 255 - 32 * 30))
    A("  v_lshlrev_b32 v14, 10, v2")
    A("  v_sub_u32 v5, v5, v14")
    A("  v_lshlrev_b32 v14, 3, v2")
    A("  v_sub_u32 v14, v3, v14")
    A("  v_add_u32 v14, 24, v14")
    A("  v_mul_u32_u24 v6, 144, v14")
    A("  v_lshl_add_u32 v6, v4, 4, v6")
    A("  v_add_u32 v6, %d, v6" % PL0)
    A("  v_lshlrev_b32 v10, 11, v2")
    A("  v_lshl_add_u32 v10, v1, 4, v10")
    A("  v_add_u32 v10, %d, v10" % RED)
    A("  s_barrier")
    NR = 16
    VA2, VB2 = 15, 16
    A("  v_add_u32 v%d, %d, v5" % (VA2, COPY1 - COPY0))
    A("  v_add_u32 v%d, %d, v6" % (VB2, PL1 - PL0))
    issued = []
    st = {"done": -1}
    def lds(text, tag):
        A(text); issued.append(tag)
    def need(tags):
        idx = max(issued.index(t) for t in tags)
        if idx > st["done"]:
            n = len(issued) - 1 - idx
            assert n <= 15, n
            A("  s_waitcnt lgkmcnt(%d)" % n)
            st["done"] = idx
    def a_reg(ch, crel):
        return AF + 4 * ((ch * 34 + crel + 3) % NR)
    def a_off(crel):
        return 32 * (30 - crel)
    def b_reg(dd, ks):
        return BF + 16 * (dd % 2) + 4 * ks
    def b_off(dd, ks):
        return (7 - dd) * 144 + 32 * ks
    def rdA(ch, c):
        return ("  ds_read_b128 %s, v%d offset:%d" % (vr(a_reg(ch, c), 4), 5 if ch % 2 == 0 else VA2, a_off(c)), ("A", ch, c))
    def rdB(ch, dd, ks):
        return ("  ds_read_b128 %s, v%d offset:%d" % (vr(b_reg(dd, ks), 4), 6 if ch % 2 == 0 else VB2, b_off(dd, ks)), ("B", ch, dd, ks))
    def reads_for(ch, dd):
        if dd == 0:
            return [rdB(ch, 0, 0), rdA(ch, 0), rdA(ch, 2), rdB(ch, 0, 1), rdA(ch, -1), rdA(ch, 1), rdB(ch, 0, 2), rdA(ch, -2), rdB(ch, 0, 3), rdA(ch, -3)]
        c = 4 * dd
        return [rdB(ch, dd, 0), rdA(ch, c), rdA(ch, c + 2), rdB(ch, dd, 1), rdA(ch, c - 1), rdA(ch, c + 1), rdB(ch, dd, 2), rdB(ch, dd, 3)]
    for x in reads_for(0, 0):
        lds(*x)
    for ch in range(9):
        if "stamp" in FL:
            stamp(); st["done"] = len(issued) - 1
        par = ch % 2
        acc0 = ACC0 + 32 * par
        pacc0 = ACC0 + 32 * (1 - par)
        redw = []
        if ch > 0:
            for Q in range(4):
                redw.append(("  ds_write_b128 v10, %s offset:%d" % (vr(pacc0 + 8 * Q, 4), Q * 8192), ("R", ch, 2 * Q)))
                redw.append(("  ds_write_b128 v10, %s offset:%d" % (vr(pacc0 + 8 * Q + 4, 4), Q * 8192 + 1024), ("R", ch, 2 * Q + 1)))
        if ch == 8:
            A("  s_nop 7")
            A("  s_nop 3")
            for x in redw:
                lds(*x)
            A("  s_waitcnt lgkmcnt(0)")
            A("  s_barrier")
            break
        for dd in range(8):
            if dd < 7:
                pf = reads_for(ch, dd + 1)
            elif ch < 7:
                pf = reads_for(ch + 1, 0)
            else:
                pf = []
            if dd == 1:
                pf = pf + redw
            k = 0
            for ks in range(4):
                for mt in range(2):
                    c = 4 * dd + 2 * mt - ks
                    need([("A", ch, c), ("B", ch, dd, ks)])
                    acc = vr(acc0 + 16 * mt, 16)
                    srcc = "0" if (dd == 0 and ks == 0) else acc
                    A("  v_mfma_f32_32x32x16_bf16 %s, %s, %s, %s" % (acc, vr(a_reg(ch, c), 4), vr(b_reg(dd, ks), 4), srcc))
                    slot = 2 * ks + mt
                    quota = -(-len(pf) * (slot + 1) // 8)
                    while k < quota:
                        lds(*pf[k]); k += 1
            if dd == MDD:
                if redw:
                    need([t for _, t in redw])
                A("  s_barrier")
        A("  s_barrier")
    A("  s_branch L_k2_final")
    A("L_k2_helper:")
    if "prio" in FL:
        A("  s_setprio 3")
    A("  v_cmp_eq_u32 s[66:67], 0, v0")
    A("  v_lshlrev_b32 v7, 4, v0")
    A("  v_lshrrev_b32 v14, 3, v0")
    A("  v_mul_u32_u24 v8, 144, v14")
    A("  v_and_b32 v14, 7, v0")
    A("  v_lshl_add_u32 v8, v14, 4, v8")
    A("  v_add_u32 v8, %d, v8" % (PL0 + 31 * 144))
    A("  v_sub_u32 v9, 255, v0")
    A("  v_lshlrev_b32 v9, 4, v9")
    A("  v_lshlrev_b32 v11, 13, v2")
    A("  v_lshl_add_u32 v11, v1, 4, v11")
    A("  v_add_u32 v11, %d, v11" % RED)
    A("  v_lshlrev_b32 v14, 6, v3")
    A("  v_lshl_add_u32 v14, v2, 4, v14")
    A("  v_lshl_add_u32 v14, v4, 2, v14")
    A("  v_lshlrev_b32 v12, 1, v14")
    A("  v_lshlrev_b32 v13, 4, v14")
    A("  v_lshl_add_u32 v13, v3, 4, v13")
    A("  v_add_u32 v13, %d, v13" % OUTS)
    CUR, PRV, KPL = 168, 172, 176
    ROT, ROT2, MIX, MIX2 = 180, 188, 196, 204
    EX, EQ, ED = 212, 216, 220
    def issue_loads(add):
        A("  s_add_u32 s74, s%d, %d" % (S_CH, add))
        A("  s_lshl_b32 s74, s74, 12")
        A("  v_add_u32 v14, s74, v7")
        A("  v_subrev_u32 v15, 16, v14")
        A("  buffer_load_dwordx4 %s, v14, s[44:47], 0 offen" % vr(CUR, 4))
        A("  buffer_load_dwordx4 %s, v15, s[44:47], 0 offen" % vr(PRV, 4))
        A("  buffer_load_dwordx4 %s, v14, s[48:51], 0 offen" % vr(KPL, 4))
    def issue_epi():
        A("  s_lshl_b32 s74, s%d, 12" % S_CH)
        A("  v_add_u32 v14, s74, v12")
        A("  buffer_load_dwordx2 %s, v14, s[44:47], 0 offen" % vr(EX, 2))
        A("  buffer_load_dwordx2 %s, v14, s[44:47], 0 offen offset:16" % vr(EX + 2, 2))
        A("  buffer_load_dwordx2 %s, v14, s[52:55], 0 offen" % vr(EQ, 2))
        A("  buffer_load_dwordx2 %s, v14, s[52:55], 0 offen offset:16" % vr(EQ + 2, 2))
        A("  s_lshl_b32 s74, s%d, 1" % S_CH)
        A("  v_mov_b32 v14, s74")
        A("  buffer_load_ushort v%d, v14, s[56:59], 0 offen" % ED)
    def build():
        for i in range(4):
            A("  v_cndmask_b32 v%d, v%d, 0, s[66:67]" % (PRV + i, PRV + i))
        W = [PRV + 0, PRV + 1, PRV + 2, PRV + 3, CUR + 0, CUR + 1, CUR + 2, CUR + 3]
        A("  ds_write_b128 v8, %s" % vr(KPL, 4))
        for k in range(7):
            A("  v_alignbit_b32 v%d, v%d, v%d, 16" % (ROT + k, W[7 - k], W[7 - k]))
            A("  v_bfi_b32 v%d, s65, v%d, v%d" % (MIX + k, W[7 - k], W[6 - k]))
        for k in range(1, 7):
            A("  v_mov_b32 v%d, v%d" % (ROT2 + k - 1, ROT + k))
            A("  v_mov_b32 v%d, v%d" % (MIX2 + k - 1, MIX + k))
        for sg in range(4):
            r = ROT + sg if sg % 2 == 0 else ROT2 + sg - 1
            m = MIX + sg if sg % 2 == 0 else MIX2 + sg - 1
            A("  ds_write_b128 v9, %s offset:%d" % (vr(r, 4), (2 * sg) * CS))
            if "halfbuild" not in FL:
                A("  ds_write_b128 v9, %s offset:%d" % (vr(m, 4), (2 * sg + 1) * CS))
        A("  v_add_u32 v9, s%d, v9" % S_DC)
        A("  v_add_u32 v8, s%d, v8" % S_DP)
        A("  s_sub_u32 s%d, 0, s%d" % (S_DC, S_DC))
        A("  s_sub_u32 s%d, 0, s%d" % (S_DP, S_DP))
    SM = 96
    EX2, EQ2, ED2 = 144, 148, 152
    def epilogue(EX, EQ, ED):
        for src in range(4):
            A("  ds_read_b128 %s, v11 offset:%d" % (vr(SM + 8 * src, 4), src * 2048))
            A("  ds_read_b128 %s, v11 offset:%d" % (vr(SM + 8 * src + 4, 4), src * 2048 + 1024))
        A("  v_lshlrev_b32 v%d, 16, v%d" % (ED, ED))
        A("  v_mov_b32 v%d, v%d" % (ED + 1, ED))
        for i in range(4):
            A("  v_mov_b32 v%d, 0x3f803f80" % (T1_ + 6))
            A("  v_cndmask_b32 v%d, v%d, v%d, s[76:77]" % (EQ + i, EQ + i, T1_ + 6))
        A("  s_waitcnt lgkmcnt(0)")
        for i in range(0, 8, 2):
            A("  v_pk_add_f32 %s, %s, %s" % (vr(SM + i, 2), vr(SM + i, 2), vr(SM + 8 + i, 2)))
            A("  v_pk_add_f32 %s, %s, %s" % (vr(SM + 16 + i, 2), vr(SM + 16 + i, 2), vr(SM + 24 + i, 2)))
        for i in range(0, 8, 2):
            A("  v_pk_add_f32 %s, %s, %s" % (vr(SM + i, 2), vr(SM + i, 2), vr(SM + 16 + i, 2)))
        for i in range(4):
            y = SM + 2 * i
            T1, T3 = T1_ + 8 * (i % 2), T1_ + 8 * (i % 2) + 4
            A("  v_cvt_pk_bf16_f32 v%d, v%d, v%d" % (T3, y, y + 1))
            A("  v_lshlrev_b32 v%d, 16, v%d" % (T1, EX + i))
            A("  v_and_b32 v%d, s64, v%d" % (T1 + 1, EX + i))
            A("  v_lshlrev_b32 v%d, 16, v%d" % (y, T3))
            A("  v_and_b32 v%d, s64, v%d" % (y + 1, T3))
            A("  v_pk_mul_f32 %s, %s, %s" % (vr(T1, 2), vr(T1, 2), vr(ED, 2)))
            A("  v_cvt_pk_bf16_f32 v%d, v%d, v%d" % (T3, T1, T1 + 1))
            A("  v_lshlrev_b32 v%d, 16, v%d" % (T1, T3))
            A("  v_and_b32 v%d, s64, v%d" % (T1 + 1, T3))
            A("  v_pk_add_f32 %s, %s, %s" % (vr(y, 2), vr(y, 2), vr(T1, 2)))
            A("  v_cvt_pk_bf16_f32 v%d, v%d, v%d" % (T3, y, y + 1))
            A("  v_lshlrev_b32 v%d, 16, v%d" % (T1, EQ + i))
            A("  v_and_b32 v%d, s64, v%d" % (T1 + 1, EQ + i))
            A("  v_lshlrev_b32 v%d, 16, v%d" % (y, T3))
            A("  v_and_b32 v%d, s64, v%d" % (y + 1, T3))
            A("  v_pk_mul_f32 %s, %s, %s" % (vr(y, 2), vr(y, 2), vr(T1, 2)))
            A("  v_cvt_pk_bf16_f32 v%d, v%d, v%d" % (T3, y, y + 1))
            tofs = (8 * (i // 2) + 2 * (i % 2)) * 16
            A("  ds_write_b16 v13, v%d offset:%d" % (T3, tofs))
            A("  ds_write_b16_d16_hi v13, v%d offset:%d" % (T3, tofs + 16))
        A("  v_add_u32 v13, 2, v13")
    T1_ = 128
    A("  s_cmp_eq_u32 s41, 0")
    A("  s_cselect_b64 s[76:77], -1, 0")
    issue_loads(0)
    ZR = 16
    for i in range(4):
        A("  v_mov_b32 v%d, 0" % (ZR + i))
    A("  v_cmp_gt_u32 vcc, 128, v0")
    A("  s_and_saveexec_b64 s[68:69], vcc")
    A("  v_lshrrev_b32 v14, 3, v0")
    A("  v_mul_u32_u24 v14, %d, v14" % CS)
    A("  v_and_b32 v15, 7, v0")
    A("  v_lshl_add_u32 v14, v15, 4, v14")
    A("  ds_write_b128 v14, %s offset:%d" % (vr(ZR, 4), 4096))
    A("  s_mov_b64 exec, s[68:69]")
    A("  v_lshlrev_b32 v14, 4, v0")
    A("  v_add_u32 v14, %d, v14" % PL0)
    A("  ds_write_b128 v14, %s offset:%d" % (vr(ZR, 4), 0))
    A("  ds_write_b128 v14, %s offset:%d" % (vr(ZR, 4), PL1 - PL0))
    A("  v_cmp_gt_u32 vcc, %d, v0" % (279 - 256))
    A("  s_and_saveexec_b64 s[68:69], vcc")
    A("  ds_write_b128 v14, %s offset:%d" % (vr(ZR, 4), 4096))
    A("  ds_write_b128 v14, %s offset:%d" % (vr(ZR, 4), PL1 - PL0 + 4096))
    A("  s_mov_b64 exec, s[68:69]")
    A("  s_waitcnt vmcnt(0)")
    build()
    issue_loads(1)
    A("  s_waitcnt lgkmcnt(0)")
    A("  s_barrier")
    A("L_k2_hloop:")
    hstamp()
    A("  s_waitcnt vmcnt(0)")
    hstamp()
    A("  s_cmp_eq_u32 s%d, 7" % S_CNT)
    A("  s_cbranch_scc1 L_k2_hnobuild")
    build()
    A("L_k2_hnobuild:")
    for i in range(4):
        A("  v_mov_b32 v%d, v%d" % (EX2 + i, EX + i))
        A("  v_mov_b32 v%d, v%d" % (EQ2 + i, EQ + i))
    A("  v_mov_b32 v%d, v%d" % (ED2, ED))
    issue_epi()
    issue_loads(2)
    A("  s_waitcnt lgkmcnt(0)")
    hstamp()
    A("  s_barrier")
    hstamp()
    A("  s_cmp_eq_u32 s%d, 0" % S_CNT)
    A("  s_cbranch_scc1 L_k2_hskip")
    epilogue(EX2, EQ2, ED2)
    A("  s_waitcnt lgkmcnt(0)")
    A("L_k2_hskip:")
    hstamp()
    A("  s_add_u32 s%d, s%d, 1" % (S_CH, S_CH))
    A("  s_add_u32 s%d, s%d, 1" % (S_CNT, S_CNT))
    A("  s_barrier")
    A("  s_cmp_lt_u32 s%d, 8" % S_CNT)
    A("  s_cbranch_scc1 L_k2_hloop")
    A("  s_waitcnt vmcnt(0)")
    A("  s_barrier")
    epilogue(EX, EQ, ED)
    A("  s_waitcnt lgkmcnt(0)")
    A("L_k2_final:")
    A("  s_barrier")
    stamp()
    A("  v_lshlrev_b32 v14, 4, v229")
    A("  v_lshrrev_b32 v15, 6, v229")
    A("  v_lshl_add_u32 v14, v15, 4, v14")
    A("  v_add_u32 v14, %d, v14" % OUTS)
    for i in range(4):
        A("  ds_read_b128 %s, v14 offset:%d" % (vr(96 + 4 * i, 4), i * (512 * 16 + 128)))
    A("  s_lshl_b32 s3, s41, 11")
    A("  s_lshl_b32 s74, s42, 1")
    A("  s_add_u32 s3, s3, s74")
    A("  v_lshlrev_b32 v15, 12, v229")
    A("  v_add_u32 v15, s3, v15")
    for i in range(4):
        A("  s_waitcnt lgkmcnt(%d)" % (3 - i))
        A("  v_add_u32 v14, 0x%x, v15" % (i * 512 * 4096))
        A("  buffer_store_dwordx4 %s, v14, s[60:63], 0 offen" % vr(96 + 4 * i, 4))
    if "stamp" in FL:
        A("  s_waitcnt vmcnt(0)")
        stamp()
        A("  s_cmp_lg_u32 s75, 0")
        A("  s_cbranch_scc1 L_k2_end")
        stamp_flush("L_k2_end")
    if "stamph" in FL:
        A("  s_cmp_lg_u32 s75, 4")
        A("  s_cbranch_scc1 L_k2_end")
        FL.add("stamp"); stamp_flush("L_k2_end"); FL.discard("stamp")
    A("L_k2_end:")
    A("  s_endpgm")

def kd(name, vgpr, sgpr=102):
    A(".p2align 6")
    A(".amdhsa_kernel %s" % name)
    A("  .amdhsa_next_free_vgpr %d" % vgpr)
    A("  .amdhsa_next_free_sgpr %d" % sgpr)
    A("  .amdhsa_accum_offset %d" % ((vgpr + 3) // 4 * 4))
    A("  .amdhsa_group_segment_fixed_size 0")
    A("  .amdhsa_kernarg_size 128")
    A("  .amdhsa_user_sgpr_count 2")
    A("  .amdhsa_user_sgpr_kernarg_segment_ptr 1")
    A("  .amdhsa_system_sgpr_workgroup_id_x 1")
    A("  .amdhsa_float_denorm_mode_32 3")
    A(".end_amdhsa_kernel")

def main():
    ref = open(OUT + ".ref").read().split("\n")
    for ln in ref:
        if ln.startswith("; Override") or ln.startswith("; grid=") or ln.startswith("; @launch"):
            continue
        if ln.startswith(";"):
            A(ln)
        else:
            break
    A("; @launch kernel=prep_kernel grid=(2560,1,1) block=(128,1,1) lds=%d" % K1_LDS)
    A("; @launch kernel=conv_kernel grid=(256,1,1) block=(512,1,1) lds=%d" % K2_LDS)
    A('.amdgcn_target "amdgcn-amd-amdhsa--gfx950"')
    A(".text")
    k1()
    k2()
    A('.section .rodata,"a"')
    kd("prep_kernel", 232 if "stamp1" in FL else 136)
    kd("conv_kernel", 232)
    open(OUTW, "w").write("\n".join(L) + "\n")
    print("wrote", OUT, len(L), "lines; K2_LDS", K2_LDS)

main()
```

```python
import sys, os
FL = set(os.environ.get("FL","").split(","))

NAME = "concat_heads__ssm_conv_s4d__ssm_conv_h3__prompt"
OUT = "cdna_kernels/%s.s" % NAME
OUTW = os.environ.get("OUTW", OUT)

L = []
def A(s=""):
    L.append(s)

def vr(a, n=1):
    return "v%d" % a if n == 1 else "v[%d:%d]" % (a, a + n - 1)
def sr(a, n=1):
    return "s%d" % a if n == 1 else "s[%d:%d]" % (a, a + n - 1)

LOG2E = 0x3fb8aa3b
INV2PI = 0x3e22f983
MB = 1 << 20
WS_U, WS_KV, WS_Q, WS_KA = 0, 4 * MB, 8 * MB, 12 * MB

P_U, P_LAR, P_AIM, P_CR, P_CI, P_LDT, P_DSK, P_Q, P_K, P_V, P_SH, P_SSK, P_SSD, P_OUT, P_DBG, P_WS = [8 + 2 * i for i in range(16)]

def hstamp():
    if "stamph" in FL:
        FL.add("stamp"); stamp(); FL.discard("stamp")

def stamp():
    if "stamp" not in FL:
        return
    A("  s_memtime s[80:81]")
    A("  s_waitcnt lgkmcnt(0)")
    A("  s_mov_b32 m0, s82")
    A("  s_nop 0")
    A("  v_writelane_b32 v230, s80, m0")
    A("  s_add_u32 s82, s82, 1")

def stamp_init():
    if "stamp" not in FL and "stamph" not in FL:
        return
    A("  s_mov_b32 s82, 0")
    A("  v_mov_b32 v230, 0")

def stamp_flush(lbl):
    if "stamp" not in FL:
        return
    A("  s_cmp_lg_u32 s2, 0")
    A("  s_cbranch_scc1 %s" % lbl)
    srd(84, P_DBG, 256)
    A("  v_lshlrev_b32 v231, 2, v0")
    A("  buffer_store_dword v230, v231, s[84:87], 0 offen")

def load_kernargs():
    A("  s_load_dwordx16 s[8:23], s[0:1], 0")
    A("  s_load_dwordx16 s[24:39], s[0:1], 64")
    A("  s_waitcnt lgkmcnt(0)")

def srd(dst, ptr, nbytes, add=0):
    if add:
        A("  s_add_u32 s%d, s%d, 0x%x" % (dst, ptr, add))
        A("  s_addc_u32 s%d, s%d, 0" % (dst + 1, ptr + 1))
        A("  s_and_b32 s%d, s%d, 0xffff" % (dst + 1, dst + 1))
    else:
        A("  s_mov_b32 s%d, s%d" % (dst, ptr))
        A("  s_and_b32 s%d, s%d, 0xffff" % (dst + 1, ptr + 1))
    A("  s_mov_b32 s%d, 0x%x" % (dst + 2, nbytes))
    A("  s_mov_b32 s%d, 0x00020000" % (dst + 3))

def cmul(d, e, w, t):
    A("  v_pk_mul_f32 %s, %s, %s op_sel:[1,1] op_sel_hi:[1,0]" % (vr(t, 2), vr(e, 2), vr(w, 2)))
    A("  v_pk_fma_f32 %s, %s, %s, %s op_sel:[0,0,0] op_sel_hi:[0,1,1] neg_lo:[0,0,1]" % (vr(d, 2), vr(e, 2), vr(w, 2), vr(t, 2)))

K1_LDS = 8448 + 128 * 48
def tile_coords(tile_sreg, tb_s, cb_s):
    A("  s_and_b32 s41, s%d, 511" % tile_sreg)
    A("  s_lshr_b32 s%d, s41, 4" % tb_s)
    A("  s_and_b32 s%d, s41, 15" % cb_s)

def tile_src_off(tb_s, cb_s, vdst):
    A("  s_lshl_b32 s3, s%d, 17" % tb_s)
    A("  s_lshl_b32 s41, s%d, 7" % cb_s)
    A("  s_add_u32 s3, s3, s41")
    A("  v_lshrrev_b32 v1, 3, v0")
    A("  v_and_b32 v2, 7, v0")
    A("  v_lshlrev_b32 v%d, 13, v1" % vdst)
    A("  v_lshl_add_u32 v%d, v2, 4, v%d" % (vdst, vdst))
    A("  v_add_u32 v%d, s3, v%d" % (vdst, vdst))

def tile_store(R0, tb_s, cb_s, dst_srd):
    A("  v_lshrrev_b32 v1, 3, v0")
    A("  v_and_b32 v2, 7, v0")
    A("  v_mul_u32_u24 v6, %d, v2" % (8 * 144))
    A("  v_lshl_add_u32 v6, v1, 3, v6")
    for d in range(4):
        T0 = 8 + 4 * (d % 2)
        A("  v_perm_b32 v%d, v%d, v%d, s101" % (T0, R0 + 4 + d, R0 + d))
        A("  v_perm_b32 v%d, v%d, v%d, s101" % (T0 + 1, R0 + 12 + d, R0 + 8 + d))
        A("  v_perm_b32 v%d, v%d, v%d, s100" % (T0 + 2, R0 + 4 + d, R0 + d))
        A("  v_perm_b32 v%d, v%d, v%d, s100" % (T0 + 3, R0 + 12 + d, R0 + 8 + d))
        A("  ds_write_b64 v6, %s offset:%d" % (vr(T0, 2), 144 * (2 * d)))
        A("  ds_write_b64 v6, %s offset:%d" % (vr(T0 + 2, 2), 144 * (2 * d + 1)))
    A("  s_waitcnt lgkmcnt(0)")
    A("  s_barrier")
    A("  v_mul_u32_u24 v6, 144, v1")
    A("  v_lshl_add_u32 v6, v2, 4, v6")
    for it in range(4):
        A("  ds_read_b128 %s, v6 offset:%d" % (vr(R0 + 4 * it, 4), 16 * 144 * it))
    A("  s_lshl_b32 s3, s%d, 18" % cb_s)
    A("  s_lshl_b32 s41, s%d, 7" % tb_s)
    A("  s_add_u32 s3, s3, s41")
    A("  v_lshlrev_b32 v7, 12, v1")
    A("  v_lshl_add_u32 v7, v2, 4, v7")
    A("  v_add_u32 v7, s3, v7")
    for it in range(4):
        A("  s_waitcnt lgkmcnt(%d)" % (3 - it))
        A("  v_add_u32 v4, 0x%x, v7" % (16 * 4096 * it))
        A("  buffer_store_dwordx4 %s, v4, s[%d:%d], 0 offen" % (vr(R0 + 4 * it, 4), dst_srd, dst_srd + 3))
    A("  s_barrier")

def k1():
    A(".globl prep_kernel")
    A(".p2align 8")
    A(".type prep_kernel,@function")
    A("prep_kernel:")
    A("  s_cmp_lt_u32 s2, 2560")
    A("  s_cbranch_scc0 L_k1_end")
    load_kernargs()
    A("  s_mov_b32 s64, 0xffff0000")
    A("  s_mov_b32 s101, 0x05040100")
    A("  s_mov_b32 s100, 0x07060302")
    A("  s_cmp_lt_u32 s2, 1024")
    A("  s_cbranch_scc1 %s" % ("L_k1_end" if "nokgen" in FL else "L_kgen"))
    if "notr" in FL:
        A("  s_branch L_k1_end")
    A("  s_sub_u32 s65, s2, 1024")
    A("  s_lshr_b32 s40, s65, 9")
    tile_coords(65, 66, 67)
    tile_src_off(66, 67, 3)
    KR, VR_, WR = 32, 60, 76
    A("  s_lshl_b32 s3, s40, 22")
    A("  s_add_u32 s68, s%d, s3" % P_WS)
    A("  s_addc_u32 s69, s%d, 0" % (P_WS + 1))
    A("  s_and_b32 s69, s69, 0xffff")
    A("  s_mov_b32 s70, 0x%x" % (4 * MB))
    A("  s_mov_b32 s71, 0x00020000")
    A("  s_cmp_eq_u32 s40, 1")
    A("  s_cbranch_scc1 L_k1_ldkv")
    A("  s_cmp_eq_u32 s40, 0")
    A("  s_cselect_b32 s72, s%d, s%d" % (P_U, P_Q))
    A("  s_cselect_b32 s73, s%d, s%d" % (P_U + 1, P_Q + 1))
    A("  s_and_b32 s73, s73, 0xffff")
    A("  s_mov_b32 s74, 0x%x" % (4 * MB))
    A("  s_mov_b32 s75, 0x00020000")
    for i in range(4):
        A("  v_add_u32 v4, %d, v3" % (2048 * i))
        A("  buffer_load_dwordx4 %s, v4, s[72:75], 0 offen" % vr(16 + 4 * i, 4))
    A("  s_waitcnt vmcnt(0)")
    A("  s_branch L_k1_st")
    A("L_k1_ldkv:")
    srd(76, P_K, 4 * MB)
    srd(80, P_V, 4 * MB)
    srd(84, P_SH, 8192)
    for i in range(7):
        off = 2048 * (i - 3)
        if off < 0:
            A("  v_subrev_u32 v4, %d, v3" % (-off))
        else:
            A("  v_add_u32 v4, %d, v3" % off)
        A("  buffer_load_dwordx4 %s, v4, s[76:79], 0 offen" % vr(KR + 4 * i, 4))
    for i in range(4):
        A("  v_add_u32 v4, %d, v3" % (2048 * i))
        A("  buffer_load_dwordx4 %s, v4, s[80:83], 0 offen" % vr(VR_ + 4 * i, 4))
    A("  s_lshl_b32 s3, s67, 9")
    A("  v_lshlrev_b32 v5, 6, v2")
    A("  v_add_u32 v5, s3, v5")
    for i in range(4):
        A("  buffer_load_dwordx4 %s, v5, s[84:87], 0 offen offset:%d" % (vr(WR + 4 * i, 4), 16 * i))
    A("  s_waitcnt vmcnt(0)")
    R0 = 16
    KF, WF, VF, AC, PT, TM = 96, 112, 120, 122, 124, 126
    def rnd(p):
        A("  v_cvt_pk_bf16_f32 v%d, v%d, v%d" % (TM, p, p + 1))
        A("  v_lshlrev_b32 v%d, 16, v%d" % (p, TM))
        A("  v_and_b32 v%d, s64, v%d" % (p + 1, TM))
    for d in range(4):
        for h in range(2):
            e = 2 * d + h
            A("  v_lshlrev_b32 v%d, 16, v%d" % (WF + 0 + h, WR + 2 * e))
            A("  v_and_b32 v%d, s64, v%d" % (WF + 2 + h, WR + 2 * e))
            A("  v_lshlrev_b32 v%d, 16, v%d" % (WF + 4 + h, WR + 2 * e + 1))
            A("  v_and_b32 v%d, s64, v%d" % (WF + 6 + h, WR + 2 * e + 1))
        for i in range(7):
            A("  v_lshlrev_b32 v%d, 16, v%d" % (KF + 2 * i, KR + 4 * i + d))
            A("  v_and_b32 v%d, s64, v%d" % (KF + 2 * i + 1, KR + 4 * i + d))
        for rho in range(4):
            A("  v_pk_mul_f32 %s, %s, %s" % (vr(AC, 2), vr(KF + 2 * rho, 2), vr(WF + 6, 2)))
            rnd(AC)
            for a in (2, 1, 0):
                A("  v_pk_mul_f32 %s, %s, %s" % (vr(PT, 2), vr(KF + 2 * (rho + 3 - a), 2), vr(WF + 2 * a, 2)))
                rnd(PT)
                A("  v_pk_add_f32 %s, %s, %s" % (vr(AC, 2), vr(AC, 2), vr(PT, 2)))
                rnd(AC)
            A("  v_lshlrev_b32 v%d, 16, v%d" % (VF, VR_ + 4 * rho + d))
            A("  v_and_b32 v%d, s64, v%d" % (VF + 1, VR_ + 4 * rho + d))
            A("  v_pk_mul_f32 %s, %s, %s" % (vr(AC, 2), vr(AC, 2), vr(VF, 2)))
            A("  v_cvt_pk_bf16_f32 v%d, v%d, v%d" % (R0 + 4 * rho + d, AC, AC + 1))
    A("L_k1_st:")
    tile_store(16, 66, 67, 68)
    A("  s_branch L_k1_end")

def k1_kgen():
    A("L_kgen:")
    if "stamp1" in FL:
        FL.add("stamp")
        stamp_init(); stamp()
    srd(40, P_LAR, 262144)
    srd(44, P_AIM, 262144)
    srd(48, P_CR, 262144)
    srd(52, P_CI, 262144)
    srd(56, P_LDT, 2048)
    srd(60, P_WS, 4 * MB, WS_KA)
    WB = 4160
    A("  v_and_b32 v8, 63, v0")
    A("  v_lshrrev_b32 v9, 6, v0")
    A("  v_mul_u32_u24 v10, %d, v9" % WB)
    A("  v_and_b32 v12, 15, v8")
    A("  v_lshrrev_b32 v13, 4, v8")
    PB = 8448
    A("  s_lshl_b32 s3, s2, 8")
    A("  v_lshlrev_b32 v1, 1, v0")
    A("  v_add_u32 v1, s3, v1")
    A("  s_lshl_b32 s3, s2, 1")
    A("  v_mov_b32 v2, s3")
    A("  buffer_load_ushort v3, v1, s[40:43], 0 offen")
    A("  buffer_load_ushort v4, v1, s[44:47], 0 offen")
    A("  buffer_load_ushort v5, v1, s[48:51], 0 offen")
    A("  buffer_load_ushort v6, v1, s[52:55], 0 offen")
    A("  buffer_load_ushort v7, v2, s[56:59], 0 offen")
    PJ = 14
    A("  v_cvt_f32_u32 v%d, v12" % PJ)
    A("  s_waitcnt vmcnt(0)")
    for r in (3, 4, 5, 6, 7):
        A("  v_lshlrev_b32 v%d, 16, v%d" % (r, r))
    A("  v_mul_f32 v7, 0x%x, v7" % LOG2E)
    A("  v_mul_f32 v3, 0x%x, v3" % LOG2E)
    A("  v_exp_f32 v7, v7")
    A("  v_exp_f32 v3, v3")
    A("  s_nop 0")
    A("  v_cvt_pk_bf16_f32 v15, v7, v3")
    A("  v_lshlrev_b32 v7, 16, v15")
    A("  v_and_b32 v3, s64, v15")
    Z, Cc, E2, E4, E8, TPp, Tt = 20, 24, 26, 28, 30, 32, 34
    A("  v_mul_f32 v20, v3, v7")
    A("  v_mul_f32 v21, v4, v7")
    A("  v_mov_b32 v22, 0")
    A("  v_mov_b32 v23, 0")
    A("  v_mul_f32 v24, v5, v7")
    A("  v_mul_f32 v25, v6, v7")
    A("  v_add_f32 v24, v24, v24")
    A("  v_add_f32 v25, v25, v25")
    for d, pp in ((E2, 256.0), (E4, 512.0), (E8, 1024.0)):
        A("  v_mul_f32 v%d, 0x%08x, v20" % (TPp, f32bits(pp)))
        A("  v_mul_f32 v%d, 0x%08x, v21" % (TPp + 1, f32bits(pp)))
        A("  v_mul_f32 v%d, 0x%x, v%d" % (TPp, LOG2E | 0x80000000, TPp))
        A("  v_mul_f32 v%d, 0x%x, v%d" % (TPp + 1, INV2PI, TPp + 1))
        A("  v_exp_f32 v%d, v%d" % (TPp, TPp))
        A("  v_fract_f32 v%d, v%d" % (TPp + 1, TPp + 1))
        A("  v_cos_f32 v%d, v%d" % (d, TPp + 1))
        A("  v_sin_f32 v%d, v%d" % (d + 1, TPp + 1))
        A("  s_nop 0")
        A("  v_pk_mul_f32 %s, %s, %s op_sel_hi:[1,0]" % (vr(d, 2), vr(d, 2), vr(TPp, 2)))
        cmul(d, d, Cc, Tt)
    A("  v_mul_u32_u24 v1, 48, v0")
    A("  ds_write_b128 v1, v[20:23] offset:%d" % PB)
    A("  ds_write_b128 v1, v[24:27] offset:%d" % (PB + 16))
    A("  ds_write_b128 v1, v[28:31] offset:%d" % (PB + 32))
    A("  v_lshlrev_b32 v1, 6, v9")
    A("  v_lshl_add_u32 v1, v13, 1, v1")
    A("  v_mul_u32_u24 v1, 48, v1")
    A("  s_waitcnt lgkmcnt(0)")
    ACC = 108
    if "stamp1" in FL: stamp()
    def mode_code(blk, e, R):
        PZ, PC, TP, T = R, R + 4, R + 12, R + 14
        Bv = [R + 16, R + 18, R + 20, R + 22]
        Av = [R + 24, R + 26, R + 28, R + 30]
        X = R + 32
        off = PB + 48 * (8 * blk + e)
        ld = ["  ds_read_b128 %s, v1 offset:%d" % (vr(PZ, 4), off),
              "  ds_read_b128 %s, v1 offset:%d" % (vr(PC, 4), off + 16),
              "  ds_read_b128 %s, v1 offset:%d" % (vr(PC + 4, 4), off + 32)]
        o = []
        def cm(d, a_, w):
            o.append("  v_pk_mul_f32 %s, %s, %s op_sel:[1,1] op_sel_hi:[1,0]" % (vr(T, 2), vr(a_, 2), vr(w, 2)))
            o.append("  v_pk_fma_f32 %s, %s, %s, %s op_sel:[0,0,0] op_sel_hi:[0,1,1] neg_lo:[0,0,1]" % (vr(d, 2), vr(a_, 2), vr(w, 2), vr(T, 2)))
        o.append("  v_pk_mul_f32 %s, %s, %s op_sel_hi:[1,0]" % (vr(TP, 2), vr(PZ, 2), vr(PJ, 2)))
        o.append("  v_mul_f32 v%d, 0x%x, v%d" % (TP, LOG2E | 0x80000000, TP))
        o.append("  v_mul_f32 v%d, 0x%x, v%d" % (TP + 1, INV2PI | 0x80000000, TP + 1))
        o.append("  v_exp_f32 v%d, v%d" % (TP, TP))
        o.append("  v_fract_f32 v%d, v%d" % (TP + 1, TP + 1))
        o.append("  v_cos_f32 v%d, v%d" % (Bv[0], TP + 1))
        o.append("  v_sin_f32 v%d, v%d" % (Bv[0] + 1, TP + 1))
        o.append("  s_nop 0")
        o.append("  v_pk_mul_f32 %s, %s, %s op_sel_hi:[1,0]" % (vr(Bv[0], 2), vr(Bv[0], 2), vr(TP, 2)))
        cm(Bv[1], Bv[0], Bv[0]); cm(Bv[2], Bv[1], Bv[1]); cm(Bv[3], Bv[2], Bv[2])
        cm(X, Bv[3], Bv[3])
        o.append("  v_xor_b32 v%d, 0x80000000, v%d" % (X + 1, X + 1))
        cm(Av[0], X, PC)
        cm(X, X, X)
        cm(Av[1], X, PC + 2)
        cm(X, X, X)
        cm(Av[2], X, PC + 4)
        cm(X, X, X)
        cm(Av[3], X, PC + 6)
        return ld, o, Av, Bv
    def mfmas(blk, sets):
        o = []
        for e in range(2):
            Av, Bv = sets[e]
            for part in range(2):
                for sidx in range(4):
                    a_ = vr(ACC + 4 * sidx, 4)
                    srcc = "0" if (blk == 0 and e == 0 and part == 0) else a_
                    o.append("  v_mfma_f32_16x16x4_f32 %s, v%d, v%d, %s" % (a_, Av[sidx] + part, Bv[sidx] + part, srcc))
        return o
    for blk in range(8):
        l0, c0_, A0, B0 = mode_code(blk, 0, 20)
        l1, c1_, A1, B1 = mode_code(blk, 1, 56)
        if blk == 0:
            for x in l0 + l1:
                A(x)
        A("  s_waitcnt lgkmcnt(0)")
        for i in range(max(len(c0_), len(c1_))):
            if i < len(c0_): A(c0_[i])
            if i < len(c1_): A(c1_[i])
        if blk < 7:
            n0, _, _, _ = mode_code(blk + 1, 0, 20)
            n1, _, _, _ = mode_code(blk + 1, 1, 56)
            for x in n0 + n1:
                A(x)
        A("  s_nop 1")
        for ln in mfmas(blk, [(A0, B0), (A1, B1)]):
            A(ln)
    if "stamp1" in FL: stamp()
    A("  s_nop 7")
    A("  s_nop 3")
    A("  v_lshlrev_b32 v15, 8, v13")
    A("  v_lshl_add_u32 v15, v12, 2, v15")
    A("  v_add_u32 v15, v15, v10")
    for sidx in range(4):
        for r in range(4):
            A("  ds_write_b32 v15, v%d offset:%d" % (ACC + 4 * sidx + r, 1024 * sidx + 64 * r))
    A("  v_cmp_eq_u32 vcc, 32, v8")
    A("  v_add_u32 v16, 4096, v10")
    A("  v_add_u32 v17, 4100, v10")
    A("  s_nop 0")
    A("  v_cndmask_b32 v16, v17, v16, vcc")
    A("  ds_write_b32 v16, v%d" % (ACC + 12))
    A("  s_waitcnt lgkmcnt(0)")
    A("  s_barrier")
    A("  v_lshlrev_b32 v1, 4, v0")
    G0, G1 = 32, 48
    for e in range(16):
        A("  v_add_u32 v2, %d, v1" % e)
        A("  v_cvt_f32_u32 v3, v2")
        A("  v_cvt_pk_bf16_f32 v3, v3, v3")
        A("  v_bfe_u32 v4, v3, 7, 9")
        A("  v_and_b32 v3, 127, v3")
        A("  v_lshl_add_u32 v3, v4, 8, v3")
        A("  v_subrev_u32 v3, %d, v3" % (134 * 256))
        A("  v_cmp_gt_u32 vcc, 256, v2")
        A("  s_nop 1")
        A("  v_cndmask_b32 v3, v3, v2, vcc")
        A("  v_lshlrev_b32 v3, 2, v3")
        A("  ds_read_b32 v%d, v3" % (G0 + e))
        A("  ds_read_b32 v%d, v3 offset:%d" % (G1 + e, WB))
    A("  s_waitcnt lgkmcnt(0)")
    for e in range(16):
        A("  v_add_f32 v%d, v%d, v%d" % (G0 + e, G0 + e, G1 + e))
    for e in range(8):
        A("  v_cvt_pk_bf16_f32 v%d, v%d, v%d" % (64 + e, G0 + 2 * e, G0 + 2 * e + 1))
    A("  s_lshl_b32 s3, s2, 12")
    A("  v_lshlrev_b32 v1, 5, v0")
    A("  v_add_u32 v1, s3, v1")
    A("  buffer_store_dwordx4 v[64:67], v1, s[60:63], 0 offen")
    A("  buffer_store_dwordx4 v[68:71], v1, s[60:63], 0 offen offset:16")
    if "stamp1" in FL:
        A("  s_waitcnt vmcnt(0)")
        stamp()
        stamp_flush("L_k1_end")
        FL.discard("stamp")
    A("L_k1_end:")
    A("  s_endpgm")

import struct
def f32bits(x):
    return struct.unpack("<I", struct.pack("<f", x))[0]

CS = 4416
COPY0, COPY1 = 0, 8 * CS
PL0 = 2 * 8 * CS
PLSZ = 63 * 144
PL1 = PL0 + PLSZ
RED = PL1 + PLSZ
OUTS = RED + 32768
K2_LDS = OUTS + 2048 * 16 + 32 * 16

MDD = int(os.environ.get("MDD", "3"))
def k2():
    A(".globl conv_kernel")
    A(".p2align 8")
    A(".type conv_kernel,@function")
    A("conv_kernel:")
    A("  s_cmp_ge_u32 s2, 256")
    A("  s_cbranch_scc1 L_k2_end")
    load_kernargs()
    stamp_init(); stamp()
    A("  s_and_b32 s3, s2, 7")
    A("  s_lshr_b32 s40, s2, 3")
    A("  s_lshr_b32 s41, s40, 4")
    A("  s_and_b32 s40, s40, 15")
    A("  s_lshl_b32 s42, s3, 7")
    A("  s_lshl_b32 s40, s40, 3")
    A("  s_add_u32 s42, s42, s40")
    A("  s_lshl_b32 s3, s41, 22")
    A("  s_add_u32 s44, s%d, s3" % P_WS)
    A("  s_addc_u32 s45, s%d, 0" % (P_WS + 1))
    A("  s_and_b32 s45, s45, 0xffff")
    A("  s_mov_b32 s46, 0x%x" % (4 * MB))
    A("  s_mov_b32 s47, 0x00020000")
    A("  s_add_u32 s48, s%d, 0x%x" % (P_WS, WS_KA))
    A("  s_addc_u32 s49, s%d, 0" % (P_WS + 1))
    A("  s_cmp_eq_u32 s41, 0")
    A("  s_cselect_b32 s48, s48, s%d" % P_SSK)
    A("  s_cselect_b32 s49, s49, s%d" % (P_SSK + 1))
    A("  s_and_b32 s49, s49, 0xffff")
    A("  s_mov_b32 s50, 0x%x" % (4 * MB))
    A("  s_mov_b32 s51, 0x00020000")
    srd(52, P_WS, 4 * MB, WS_Q)
    A("  s_cmp_eq_u32 s41, 0")
    A("  s_cselect_b32 s56, s%d, s%d" % (P_DSK, P_SSD))
    A("  s_cselect_b32 s57, s%d, s%d" % (P_DSK + 1, P_SSD + 1))
    A("  s_and_b32 s57, s57, 0xffff")
    A("  s_mov_b32 s58, 2048")
    A("  s_mov_b32 s59, 0x00020000")
    srd(60, P_OUT, 8 * MB)
    A("  s_mov_b32 s64, 0xffff0000")
    A("  s_mov_b32 s65, 0x0000ffff")
    S_CH, S_CNT, S_DC, S_DP = 70, 71, 72, 73
    A("  s_mov_b32 s%d, s42" % S_CH)
    A("  s_mov_b32 s%d, 0" % S_CNT)
    A("  s_mov_b32 s%d, %d" % (S_DC, COPY1 - COPY0))
    A("  s_mov_b32 s%d, %d" % (S_DP, PL1 - PL0))
    A("  v_mov_b32 v229, v0")
    A("  v_lshrrev_b32 v2, 6, v0")
    A("  s_nop 0")
    A("  v_readfirstlane_b32 s75, v2")
    A("  v_and_b32 v0, 255, v0")
    A("  v_and_b32 v1, 63, v0")
    A("  v_bfe_u32 v2, v0, 6, 2")
    A("  v_and_b32 v3, 31, v0")
    A("  v_bfe_u32 v4, v0, 5, 1")
    A("  s_cmp_ge_u32 s75, 4")
    A("  s_cbranch_scc1 L_k2_helper")
    ACC0, AF, BF = 32, 96, 160
    A("  v_and_b32 v14, 7, v3")
    A("  v_sub_u32 v14, 7, v14")
    A("  v_mul_u32_u24 v5, %d, v14" % CS)
    A("  v_lshrrev_b32 v14, 3, v3")
    A("  v_sub_u32 v14, v4, v14")
    A("  v_lshlrev_b32 v14, 4, v14")
    A("  v_add_u32 v5, v5, v14")
    A("  v_add_u32 v5, %d, v5" % (COPY0 + 16 * 255 - 32 * 30))
    A("  v_lshlrev_b32 v14, 10, v2")
    A("  v_sub_u32 v5, v5, v14")
    A("  v_lshlrev_b32 v14, 3, v2")
    A("  v_sub_u32 v14, v3, v14")
    A("  v_add_u32 v14, 24, v14")
    A("  v_mul_u32_u24 v6, 144, v14")
    A("  v_lshl_add_u32 v6, v4, 4, v6")
    A("  v_add_u32 v6, %d, v6" % PL0)
    A("  v_lshlrev_b32 v10, 11, v2")
    A("  v_lshl_add_u32 v10, v1, 4, v10")
    A("  v_add_u32 v10, %d, v10" % RED)
    A("  s_barrier")
    NR = 16
    VA2, VB2 = 15, 16
    A("  v_add_u32 v%d, %d, v5" % (VA2, COPY1 - COPY0))
    A("  v_add_u32 v%d, %d, v6" % (VB2, PL1 - PL0))
    issued = []
    st = {"done": -1}
    def lds(text, tag):
        A(text); issued.append(tag)
    def need(tags):
        idx = max(issued.index(t) for t in tags)
        if idx > st["done"]:
            n = len(issued) - 1 - idx
            assert n <= 15, n
            A("  s_waitcnt lgkmcnt(%d)" % n)
            st["done"] = idx
    def a_reg(ch, crel):
        return AF + 4 * ((ch * 34 + crel + 3) % NR)
    def a_off(crel):
        return 32 * (30 - crel)
    def b_reg(dd, ks):
        return BF + 16 * (dd % 2) + 4 * ks
    def b_off(dd, ks):
        return (7 - dd) * 144 + 32 * ks
    def rdA(ch, c):
        return ("  ds_read_b128 %s, v%d offset:%d" % (vr(a_reg(ch, c), 4), 5 if ch % 2 == 0 else VA2, a_off(c)), ("A", ch, c))
    def rdB(ch, dd, ks):
        return ("  ds_read_b128 %s, v%d offset:%d" % (vr(b_reg(dd, ks), 4), 6 if ch % 2 == 0 else VB2, b_off(dd, ks)), ("B", ch, dd, ks))
    def reads_for(ch, dd):
        if dd == 0:
            return [rdB(ch, 0, 0), rdA(ch, 0), rdA(ch, 2), rdB(ch, 0, 1), rdA(ch, -1), rdA(ch, 1), rdB(ch, 0, 2), rdA(ch, -2), rdB(ch, 0, 3), rdA(ch, -3)]
        c = 4 * dd
        return [rdB(ch, dd, 0), rdA(ch, c), rdA(ch, c + 2), rdB(ch, dd, 1), rdA(ch, c - 1), rdA(ch, c + 1), rdB(ch, dd, 2), rdB(ch, dd, 3)]
    for x in reads_for(0, 0):
        lds(*x)
    for ch in range(9):
        if "stamp" in FL:
            stamp(); st["done"] = len(issued) - 1
        par = ch % 2
        acc0 = ACC0 + 32 * par
        pacc0 = ACC0 + 32 * (1 - par)
        redw = []
        if ch > 0:
            for Q in range(4):
                redw.append(("  ds_write_b128 v10, %s offset:%d" % (vr(pacc0 + 8 * Q, 4), Q * 8192), ("R", ch, 2 * Q)))
                redw.append(("  ds_write_b128 v10, %s offset:%d" % (vr(pacc0 + 8 * Q + 4, 4), Q * 8192 + 1024), ("R", ch, 2 * Q + 1)))
        if ch == 8:
            A("  s_nop 7")
            A("  s_nop 3")
            for x in redw:
                lds(*x)
            A("  s_waitcnt lgkmcnt(0)")
            A("  s_barrier")
            break
        for dd in range(8):
            if dd < 7:
                pf = reads_for(ch, dd + 1)
            elif ch < 7:
                pf = reads_for(ch + 1, 0)
            else:
                pf = []
            if dd == 1:
                pf = pf + redw
            k = 0
            for ks in range(4):
                for mt in range(2):
                    c = 4 * dd + 2 * mt - ks
                    need([("A", ch, c), ("B", ch, dd, ks)])
                    acc = vr(acc0 + 16 * mt, 16)
                    srcc = "0" if (dd == 0 and ks == 0) else acc
                    A("  v_mfma_f32_32x32x16_bf16 %s, %s, %s, %s" % (acc, vr(a_reg(ch, c), 4), vr(b_reg(dd, ks), 4), srcc))
                    slot = 2 * ks + mt
                    quota = -(-len(pf) * (slot + 1) // 8)
                    while k < quota:
                        lds(*pf[k]); k += 1
            if dd == MDD:
                if redw:
                    need([t for _, t in redw])
                A("  s_barrier")
        A("  s_barrier")
    A("  s_branch L_k2_final")
    A("L_k2_helper:")
    if "prio" in FL:
        A("  s_setprio 3")
    A("  v_cmp_eq_u32 s[66:67], 0, v0")
    A("  v_lshlrev_b32 v7, 4, v0")
    A("  v_lshrrev_b32 v14, 3, v0")
    A("  v_mul_u32_u24 v8, 144, v14")
    A("  v_and_b32 v14, 7, v0")
    A("  v_lshl_add_u32 v8, v14, 4, v8")
    A("  v_add_u32 v8, %d, v8" % (PL0 + 31 * 144))
    A("  v_sub_u32 v9, 255, v0")
    A("  v_lshlrev_b32 v9, 4, v9")
    A("  v_lshlrev_b32 v11, 13, v2")
    A("  v_lshl_add_u32 v11, v1, 4, v11")
    A("  v_add_u32 v11, %d, v11" % RED)
    A("  v_lshlrev_b32 v14, 6, v3")
    A("  v_lshl_add_u32 v14, v2, 4, v14")
    A("  v_lshl_add_u32 v14, v4, 2, v14")
    A("  v_lshlrev_b32 v12, 1, v14")
    A("  v_lshlrev_b32 v13, 4, v14")
    A("  v_lshl_add_u32 v13, v3, 4, v13")
    A("  v_add_u32 v13, %d, v13" % OUTS)
    CUR, PRV, KPL = 168, 172, 176
    ROT, ROT2, MIX, MIX2 = 180, 188, 196, 204
    EX, EQ, ED = 212, 216, 220
    def issue_loads(add):
        A("  s_add_u32 s74, s%d, %d" % (S_CH, add))
        A("  s_lshl_b32 s74, s74, 12")
        A("  v_add_u32 v14, s74, v7")
        A("  v_subrev_u32 v15, 16, v14")
        A("  buffer_load_dwordx4 %s, v14, s[44:47], 0 offen" % vr(CUR, 4))
        A("  buffer_load_dwordx4 %s, v15, s[44:47], 0 offen" % vr(PRV, 4))
        A("  buffer_load_dwordx4 %s, v14, s[48:51], 0 offen" % vr(KPL, 4))
    def issue_epi():
        A("  s_lshl_b32 s74, s%d, 12" % S_CH)
        A("  v_add_u32 v14, s74, v12")
        A("  buffer_load_dwordx2 %s, v14, s[44:47], 0 offen" % vr(EX, 2))
        A("  buffer_load_dwordx2 %s, v14, s[44:47], 0 offen offset:16" % vr(EX + 2, 2))
        A("  buffer_load_dwordx2 %s, v14, s[52:55], 0 offen" % vr(EQ, 2))
        A("  buffer_load_dwordx2 %s, v14, s[52:55], 0 offen offset:16" % vr(EQ + 2, 2))
        A("  s_lshl_b32 s74, s%d, 1" % S_CH)
        A("  v_mov_b32 v14, s74")
        A("  buffer_load_ushort v%d, v14, s[56:59], 0 offen" % ED)
    def build():
        if "nobuild" in FL:
            return
        for i in range(4):
            A("  v_cndmask_b32 v%d, v%d, 0, s[66:67]" % (PRV + i, PRV + i))
        W = [PRV + 0, PRV + 1, PRV + 2, PRV + 3, CUR + 0, CUR + 1, CUR + 2, CUR + 3]
        A("  ds_write_b128 v8, %s" % vr(KPL, 4))
        for k in range(7):
            A("  v_alignbit_b32 v%d, v%d, v%d, 16" % (ROT + k, W[7 - k], W[7 - k]))
            A("  v_bfi_b32 v%d, s65, v%d, v%d" % (MIX + k, W[7 - k], W[6 - k]))
        for k in range(1, 7):
            A("  v_mov_b32 v%d, v%d" % (ROT2 + k - 1, ROT + k))
            A("  v_mov_b32 v%d, v%d" % (MIX2 + k - 1, MIX + k))
        for sg in range(4):
            r = ROT + sg if sg % 2 == 0 else ROT2 + sg - 1
            m = MIX + sg if sg % 2 == 0 else MIX2 + sg - 1
            A("  ds_write_b128 v9, %s offset:%d" % (vr(r, 4), (2 * sg) * CS))
            if "halfbuild" not in FL:
                A("  ds_write_b128 v9, %s offset:%d" % (vr(m, 4), (2 * sg + 1) * CS))
        A("  v_add_u32 v9, s%d, v9" % S_DC)
        A("  v_add_u32 v8, s%d, v8" % S_DP)
        A("  s_sub_u32 s%d, 0, s%d" % (S_DC, S_DC))
        A("  s_sub_u32 s%d, 0, s%d" % (S_DP, S_DP))
    SM = 96
    EX2, EQ2, ED2 = 144, 148, 152
    def epilogue(EX, EQ, ED):
        if "noepi" in FL:
            return
        for src in range(4):
            A("  ds_read_b128 %s, v11 offset:%d" % (vr(SM + 8 * src, 4), src * 2048))
            A("  ds_read_b128 %s, v11 offset:%d" % (vr(SM + 8 * src + 4, 4), src * 2048 + 1024))
        A("  v_lshlrev_b32 v%d, 16, v%d" % (ED, ED))
        A("  v_mov_b32 v%d, v%d" % (ED + 1, ED))
        for i in range(4):
            A("  v_mov_b32 v%d, 0x3f803f80" % (T1_ + 6))
            A("  v_cndmask_b32 v%d, v%d, v%d, s[76:77]" % (EQ + i, EQ + i, T1_ + 6))
        A("  s_waitcnt lgkmcnt(0)")
        for i in range(0, 8, 2):
            A("  v_pk_add_f32 %s, %s, %s" % (vr(SM + i, 2), vr(SM + i, 2), vr(SM + 8 + i, 2)))
            A("  v_pk_add_f32 %s, %s, %s" % (vr(SM + 16 + i, 2), vr(SM + 16 + i, 2), vr(SM + 24 + i, 2)))
        for i in range(0, 8, 2):
            A("  v_pk_add_f32 %s, %s, %s" % (vr(SM + i, 2), vr(SM + i, 2), vr(SM + 16 + i, 2)))
        for i in range(4):
            y = SM + 2 * i
            T1, T3 = T1_ + 8 * (i % 2), T1_ + 8 * (i % 2) + 4
            A("  v_cvt_pk_bf16_f32 v%d, v%d, v%d" % (T3, y, y + 1))
            A("  v_lshlrev_b32 v%d, 16, v%d" % (T1, EX + i))
            A("  v_and_b32 v%d, s64, v%d" % (T1 + 1, EX + i))
            A("  v_lshlrev_b32 v%d, 16, v%d" % (y, T3))
            A("  v_and_b32 v%d, s64, v%d" % (y + 1, T3))
            A("  v_pk_mul_f32 %s, %s, %s" % (vr(T1, 2), vr(T1, 2), vr(ED, 2)))
            A("  v_cvt_pk_bf16_f32 v%d, v%d, v%d" % (T3, T1, T1 + 1))
            A("  v_lshlrev_b32 v%d, 16, v%d" % (T1, T3))
            A("  v_and_b32 v%d, s64, v%d" % (T1 + 1, T3))
            A("  v_pk_add_f32 %s, %s, %s" % (vr(y, 2), vr(y, 2), vr(T1, 2)))
            A("  v_cvt_pk_bf16_f32 v%d, v%d, v%d" % (T3, y, y + 1))
            A("  v_lshlrev_b32 v%d, 16, v%d" % (T1, EQ + i))
            A("  v_and_b32 v%d, s64, v%d" % (T1 + 1, EQ + i))
            A("  v_lshlrev_b32 v%d, 16, v%d" % (y, T3))
            A("  v_and_b32 v%d, s64, v%d" % (y + 1, T3))
            A("  v_pk_mul_f32 %s, %s, %s" % (vr(y, 2), vr(y, 2), vr(T1, 2)))
            A("  v_cvt_pk_bf16_f32 v%d, v%d, v%d" % (T3, y, y + 1))
            tofs = (8 * (i // 2) + 2 * (i % 2)) * 16
            if "noouts" not in FL:
                A("  ds_write_b16 v13, v%d offset:%d" % (T3, tofs))
                A("  ds_write_b16_d16_hi v13, v%d offset:%d" % (T3, tofs + 16))
        A("  v_add_u32 v13, 2, v13")
    T1_ = 128
    A("  s_cmp_eq_u32 s41, 0")
    A("  s_cselect_b64 s[76:77], -1, 0")
    issue_loads(0)
    ZR = 16
    for i in range(4):
        A("  v_mov_b32 v%d, 0" % (ZR + i))
    A("  v_cmp_gt_u32 vcc, 128, v0")
    A("  s_and_saveexec_b64 s[68:69], vcc")
    A("  v_lshrrev_b32 v14, 3, v0")
    A("  v_mul_u32_u24 v14, %d, v14" % CS)
    A("  v_and_b32 v15, 7, v0")
    A("  v_lshl_add_u32 v14, v15, 4, v14")
    A("  ds_write_b128 v14, %s offset:%d" % (vr(ZR, 4), 4096))
    A("  s_mov_b64 exec, s[68:69]")
    A("  v_lshlrev_b32 v14, 4, v0")
    A("  v_add_u32 v14, %d, v14" % PL0)
    A("  ds_write_b128 v14, %s offset:%d" % (vr(ZR, 4), 0))
    A("  ds_write_b128 v14, %s offset:%d" % (vr(ZR, 4), PL1 - PL0))
    A("  v_cmp_gt_u32 vcc, %d, v0" % (279 - 256))
    A("  s_and_saveexec_b64 s[68:69], vcc")
    A("  ds_write_b128 v14, %s offset:%d" % (vr(ZR, 4), 4096))
    A("  ds_write_b128 v14, %s offset:%d" % (vr(ZR, 4), PL1 - PL0 + 4096))
    A("  s_mov_b64 exec, s[68:69]")
    A("  s_waitcnt vmcnt(0)")
    build()
    issue_loads(1)
    A("  s_waitcnt lgkmcnt(0)")
    A("  s_barrier")
    A("L_k2_hloop:")
    hstamp()
    A("  s_waitcnt vmcnt(0)")
    hstamp()
    A("  s_cmp_eq_u32 s%d, 7" % S_CNT)
    A("  s_cbranch_scc1 L_k2_hnobuild")
    build()
    A("L_k2_hnobuild:")
    if "fine" in FL: hstamp()
    for i in range(4):
        A("  v_mov_b32 v%d, v%d" % (EX2 + i, EX + i))
        A("  v_mov_b32 v%d, v%d" % (EQ2 + i, EQ + i))
    A("  v_mov_b32 v%d, v%d" % (ED2, ED))
    if "fine" in FL: hstamp()
    issue_epi()
    if "fine" in FL: hstamp()
    issue_loads(2)
    A("  s_waitcnt lgkmcnt(0)")
    hstamp()
    A("  s_barrier")
    hstamp()
    A("  s_cmp_eq_u32 s%d, 0" % S_CNT)
    A("  s_cbranch_scc1 L_k2_hskip")
    epilogue(EX2, EQ2, ED2)
    A("  s_waitcnt lgkmcnt(0)")
    A("L_k2_hskip:")
    hstamp()
    A("  s_add_u32 s%d, s%d, 1" % (S_CH, S_CH))
    A("  s_add_u32 s%d, s%d, 1" % (S_CNT, S_CNT))
    A("  s_barrier")
    A("  s_cmp_lt_u32 s%d, 8" % S_CNT)
    A("  s_cbranch_scc1 L_k2_hloop")
    A("  s_waitcnt vmcnt(0)")
    A("  s_barrier")
    epilogue(EX, EQ, ED)
    A("  s_waitcnt lgkmcnt(0)")
    A("L_k2_final:")
    A("  s_barrier")
    stamp()
    A("  v_lshlrev_b32 v14, 4, v229")
    A("  v_lshrrev_b32 v15, 6, v229")
    A("  v_lshl_add_u32 v14, v15, 4, v14")
    A("  v_add_u32 v14, %d, v14" % OUTS)
    for i in range(4):
        A("  ds_read_b128 %s, v14 offset:%d" % (vr(96 + 4 * i, 4), i * (512 * 16 + 128)))
    A("  s_lshl_b32 s3, s41, 11")
    A("  s_lshl_b32 s74, s42, 1")
    A("  s_add_u32 s3, s3, s74")
    A("  v_lshlrev_b32 v15, 12, v229")
    A("  v_add_u32 v15, s3, v15")
    for i in range(4):
        A("  s_waitcnt lgkmcnt(%d)" % (3 - i))
        A("  v_add_u32 v14, 0x%x, v15" % (i * 512 * 4096))
        A("  buffer_store_dwordx4 %s, v14, s[60:63], 0 offen" % vr(96 + 4 * i, 4))
    if "stamp" in FL:
        A("  s_waitcnt vmcnt(0)")
        stamp()
        A("  s_cmp_lg_u32 s75, 0")
        A("  s_cbranch_scc1 L_k2_end")
        stamp_flush("L_k2_end")
    if "stamph" in FL:
        A("  s_cmp_lg_u32 s75, 4")
        A("  s_cbranch_scc1 L_k2_end")
        FL.add("stamp"); stamp_flush("L_k2_end"); FL.discard("stamp")
    A("L_k2_end:")
    A("  s_endpgm")

def k2i():
    A(".globl conv_kernel")
    A(".p2align 8")
    A(".type conv_kernel,@function")
    A("conv_kernel:")
    A("  s_cmp_ge_u32 s2, 256")
    A("  s_cbranch_scc1 L_k2_end")
    load_kernargs()
    stamp_init(); stamp()
    A("  s_and_b32 s3, s2, 7")
    A("  s_lshr_b32 s40, s2, 3")
    A("  s_lshr_b32 s41, s40, 4")
    A("  s_and_b32 s40, s40, 15")
    A("  s_lshl_b32 s42, s3, 7")
    A("  s_lshl_b32 s40, s40, 3")
    A("  s_add_u32 s42, s42, s40")
    A("  s_lshl_b32 s3, s41, 22")
    A("  s_add_u32 s44, s%d, s3" % P_WS)
    A("  s_addc_u32 s45, s%d, 0" % (P_WS + 1))
    A("  s_and_b32 s45, s45, 0xffff")
    A("  s_mov_b32 s46, 0x%x" % (4 * MB))
    A("  s_mov_b32 s47, 0x00020000")
    A("  s_add_u32 s48, s%d, 0x%x" % (P_WS, WS_KA))
    A("  s_addc_u32 s49, s%d, 0" % (P_WS + 1))
    A("  s_cmp_eq_u32 s41, 0")
    A("  s_cselect_b32 s48, s48, s%d" % P_SSK)
    A("  s_cselect_b32 s49, s49, s%d" % (P_SSK + 1))
    A("  s_and_b32 s49, s49, 0xffff")
    A("  s_mov_b32 s50, 0x%x" % (4 * MB))
    A("  s_mov_b32 s51, 0x00020000")
    srd(52, P_WS, 4 * MB, WS_Q)
    A("  s_cmp_eq_u32 s41, 0")
    A("  s_cselect_b32 s56, s%d, s%d" % (P_DSK, P_SSD))
    A("  s_cselect_b32 s57, s%d, s%d" % (P_DSK + 1, P_SSD + 1))
    A("  s_and_b32 s57, s57, 0xffff")
    A("  s_mov_b32 s58, 2048")
    A("  s_mov_b32 s59, 0x00020000")
    srd(60, P_OUT, 8 * MB)
    A("  s_mov_b32 s64, 0xffff0000")
    A("  s_mov_b32 s65, 0x0000ffff")
    A("  s_cmp_eq_u32 s41, 0")
    A("  s_cselect_b64 s[76:77], -1, 0")
    A("  s_lshl_b32 s70, s42, 12")
    A("  v_and_b32 v1, 63, v0")
    A("  v_lshrrev_b32 v2, 6, v0")
    A("  v_and_b32 v3, 31, v0")
    A("  v_bfe_u32 v4, v0, 5, 1")
    A("  v_cmp_eq_u32 s[66:67], 0, v0")
    A("  v_and_b32 v14, 7, v3")
    A("  v_sub_u32 v14, 7, v14")
    A("  v_mul_u32_u24 v5, %d, v14" % CS)
    A("  v_lshrrev_b32 v14, 3, v3")
    A("  v_sub_u32 v14, v4, v14")
    A("  v_lshlrev_b32 v14, 4, v14")
    A("  v_add_u32 v5, v5, v14")
    A("  v_add_u32 v5, %d, v5" % (COPY0 + 16 * 255 - 32 * 30))
    A("  v_lshlrev_b32 v14, 10, v2")
    A("  v_sub_u32 v5, v5, v14")
    A("  v_lshlrev_b32 v14, 3, v2")
    A("  v_sub_u32 v14, v3, v14")
    A("  v_add_u32 v14, 24, v14")
    A("  v_mul_u32_u24 v6, 144, v14")
    A("  v_lshl_add_u32 v6, v4, 4, v6")
    A("  v_add_u32 v6, %d, v6" % PL0)
    A("  v_add_u32 v15, %d, v5" % (COPY1 - COPY0))
    A("  v_add_u32 v16, %d, v6" % (PL1 - PL0))
    A("  v_lshlrev_b32 v10, 11, v2")
    A("  v_lshl_add_u32 v10, v1, 4, v10")
    A("  v_add_u32 v10, %d, v10" % RED)
    A("  v_lshlrev_b32 v7, 4, v0")
    A("  v_add_u32 v7, s70, v7")
    A("  v_lshrrev_b32 v14, 3, v0")
    A("  v_mul_u32_u24 v8, 144, v14")
    A("  v_and_b32 v14, 7, v0")
    A("  v_lshl_add_u32 v8, v14, 4, v8")
    A("  v_add_u32 v8, %d, v8" % (PL0 + 31 * 144))
    A("  v_add_u32 v18, %d, v8" % (PL1 - PL0))
    A("  v_sub_u32 v9, 255, v0")
    A("  v_lshlrev_b32 v9, 4, v9")
    A("  v_add_u32 v19, %d, v9" % (COPY1 - COPY0))
    A("  v_lshlrev_b32 v11, 13, v2")
    A("  v_lshl_add_u32 v11, v1, 4, v11")
    A("  v_add_u32 v11, %d, v11" % RED)
    A("  v_lshlrev_b32 v14, 6, v3")
    A("  v_lshl_add_u32 v14, v2, 4, v14")
    A("  v_lshl_add_u32 v14, v4, 2, v14")
    A("  v_lshlrev_b32 v12, 1, v14")
    A("  v_add_u32 v12, s70, v12")
    A("  v_lshlrev_b32 v13, 4, v14")
    A("  v_lshl_add_u32 v13, v3, 4, v13")
    A("  v_add_u32 v13, %d, v13" % OUTS)
    A("  s_lshl_b32 s3, s42, 1")
    A("  v_mov_b32 v17, s3")
    A("  v_mov_b32 v20, 0x3f803f80")
    AF, BF = 32, 96
    CUR, PRV, KPL = 128, 132, 136
    ROT, ROT2, MIX, MIX2 = 140, 148, 156, 164
    EXs, EQs, EDs = (172, 182), (176, 186), (180, 190)
    SM, T1_ = 192, 224
    issued = []
    st = {"done": -1}
    vm = []
    def emit(it):
        k = it[0]
        if k == "v":
            A(it[1])
        elif k == "lds":
            A(it[1]); issued.append(it[2])
        elif k == "need":
            need(it[1])
        elif k == "vm":
            A(it[1]); vm.append(it[2])
        elif k == "vneed":
            vneed(it[1])
    def need(tags):
        idx = max(issued.index(t) for t in tags)
        if idx > st["done"]:
            n = len(issued) - 1 - idx
            assert n <= 15, n
            A("  s_waitcnt lgkmcnt(%d)" % n)
            st["done"] = idx
    def vneed(tags):
        idx = max(vm.index(t) for t in tags if t in vm) if any(t in vm for t in tags) else -1
        if idx >= 0:
            A("  s_waitcnt vmcnt(%d)" % (len(vm) - 1 - idx))
            del vm[:idx + 1]
    def f_loads(ch):
        if ch > 7:
            return []
        off = 4096 * ch
        return [("v", "  v_add_u32 v14, %d, v7" % off), ("v", "  v_subrev_u32 v21, 16, v14"),
                ("vm", "  buffer_load_dwordx4 %s, v14, s[44:47], 0 offen" % vr(CUR, 4), ("x", ch)),
                ("vm", "  buffer_load_dwordx4 %s, v21, s[44:47], 0 offen" % vr(PRV, 4), ("x", ch)),
                ("vm", "  buffer_load_dwordx4 %s, v14, s[48:51], 0 offen" % vr(KPL, 4), ("x", ch))]
    def f_epi_loads(ch):
        EX, EQ, ED = EXs[ch % 2], EQs[ch % 2], EDs[ch % 2]
        off = 4096 * ch
        return [("v", "  v_add_u32 v22, %d, v12" % off),
                ("vm", "  buffer_load_dwordx2 %s, v22, s[44:47], 0 offen" % vr(EX, 2), ("e", ch)),
                ("vm", "  buffer_load_dwordx2 %s, v22, s[44:47], 0 offen offset:16" % vr(EX + 2, 2), ("e", ch)),
                ("vm", "  buffer_load_dwordx2 %s, v22, s[52:55], 0 offen" % vr(EQ, 2), ("e", ch)),
                ("vm", "  buffer_load_dwordx2 %s, v22, s[52:55], 0 offen offset:16" % vr(EQ + 2, 2), ("e", ch)),
                ("vm", "  buffer_load_ushort v%d, v17, s[56:59], 0 offen offset:%d" % (ED, 2 * ch), ("e", ch))]
    def f_build(ch):
        if ch > 7:
            return []
        vp, vc = (8, 9) if ch % 2 == 0 else (18, 19)
        o = [("vneed", [("x", ch)])]
        o.append(("lds", "  ds_write_b128 v%d, %s" % (vp, vr(KPL, 4)), ("bw", ch, 8)))
        for i in range(4):
            o.append(("v", "  v_cndmask_b32 v%d, v%d, 0, s[66:67]" % (PRV + i, PRV + i)))
        W = [PRV + 0, PRV + 1, PRV + 2, PRV + 3, CUR + 0, CUR + 1, CUR + 2, CUR + 3]
        for k in range(7):
            o.append(("v", "  v_alignbit_b32 v%d, v%d, v%d, 16" % (ROT + k, W[7 - k], W[7 - k])))
            o.append(("v", "  v_bfi_b32 v%d, s65, v%d, v%d" % (MIX + k, W[7 - k], W[6 - k])))
        for k in range(1, 7):
            o.append(("v", "  v_alignbit_b32 v%d, v%d, v%d, 16" % (ROT2 + k - 1, W[7 - k], W[7 - k])))
            o.append(("v", "  v_bfi_b32 v%d, s65, v%d, v%d" % (MIX2 + k - 1, W[7 - k], W[6 - k])))
        for sg in range(4):
            r = ROT + sg if sg % 2 == 0 else ROT2 + sg - 1
            m = MIX + sg if sg % 2 == 0 else MIX2 + sg - 1
            o.append(("lds", "  ds_write_b128 v%d, %s offset:%d" % (vc, vr(r, 4), (2 * sg) * CS), ("bw", ch, 2 * sg)))
            o.append(("lds", "  ds_write_b128 v%d, %s offset:%d" % (vc, vr(m, 4), (2 * sg + 1) * CS), ("bw", ch, 2 * sg + 1)))
        return o
    def f_red(ch):
        b_ = 32 * (ch % 2)
        o = []
        for Q in range(4):
            o.append(("lds", "  ds_write_b128 v10, a[%d:%d] offset:%d" % (b_ + 8 * Q, b_ + 8 * Q + 3, Q * 8192), ("R", ch, 2 * Q)))
            o.append(("lds", "  ds_write_b128 v10, a[%d:%d] offset:%d" % (b_ + 8 * Q + 4, b_ + 8 * Q + 7, Q * 8192 + 1024), ("R", ch, 2 * Q + 1)))
        return o
    def f_epi(ch):
        EX, EQ, ED = EXs[ch % 2], EQs[ch % 2], EDs[ch % 2]
        o = []
        for src in range(4):
            o.append(("lds", "  ds_read_b128 %s, v11 offset:%d" % (vr(SM + 8 * src, 4), src * 2048), ("rr", ch, 2 * src)))
            o.append(("lds", "  ds_read_b128 %s, v11 offset:%d" % (vr(SM + 8 * src + 4, 4), src * 2048 + 1024), ("rr", ch, 2 * src + 1)))
        o.append(("vneed", [("e", ch)]))
        o.append(("v", "  v_lshlrev_b32 v%d, 16, v%d" % (ED, ED)))
        for i in range(4):
            o.append(("v", "  v_cndmask_b32 v%d, v%d, v20, s[76:77]" % (EQ + i, EQ + i)))
        o.append(("need", [("rr", ch, i) for i in range(8)]))
        for i in range(0, 8, 2):
            o.append(("v", "  v_pk_add_f32 %s, %s, %s" % (vr(SM + i, 2), vr(SM + i, 2), vr(SM + 8 + i, 2))))
            o.append(("v", "  v_pk_add_f32 %s, %s, %s" % (vr(SM + 16 + i, 2), vr(SM + 16 + i, 2), vr(SM + 24 + i, 2))))
        for i in range(0, 8, 2):
            o.append(("v", "  v_pk_add_f32 %s, %s, %s" % (vr(SM + i, 2), vr(SM + i, 2), vr(SM + 16 + i, 2))))
        for i in range(4):
            y = SM + 2 * i
            T1, T3 = T1_ + 8 * (i % 2), T1_ + 8 * (i % 2) + 4
            for t in ["  v_cvt_pk_bf16_f32 v%d, v%d, v%d" % (T3, y, y + 1),
                      "  v_lshlrev_b32 v%d, 16, v%d" % (T1, EX + i),
                      "  v_and_b32 v%d, s64, v%d" % (T1 + 1, EX + i),
                      "  v_lshlrev_b32 v%d, 16, v%d" % (y, T3),
                      "  v_and_b32 v%d, s64, v%d" % (y + 1, T3),
                      "  v_pk_mul_f32 %s, %s, %s op_sel_hi:[1,0]" % (vr(T1, 2), vr(T1, 2), vr(ED, 2)),
                      "  v_cvt_pk_bf16_f32 v%d, v%d, v%d" % (T3, T1, T1 + 1),
                      "  v_lshlrev_b32 v%d, 16, v%d" % (T1, T3),
                      "  v_and_b32 v%d, s64, v%d" % (T1 + 1, T3),
                      "  v_pk_add_f32 %s, %s, %s" % (vr(y, 2), vr(y, 2), vr(T1, 2)),
                      "  v_cvt_pk_bf16_f32 v%d, v%d, v%d" % (T3, y, y + 1),
                      "  v_lshlrev_b32 v%d, 16, v%d" % (T1, EQ + i),
                      "  v_and_b32 v%d, s64, v%d" % (T1 + 1, EQ + i),
                      "  v_lshlrev_b32 v%d, 16, v%d" % (y, T3),
                      "  v_and_b32 v%d, s64, v%d" % (y + 1, T3),
                      "  v_pk_mul_f32 %s, %s, %s" % (vr(y, 2), vr(y, 2), vr(T1, 2)),
                      "  v_cvt_pk_bf16_f32 v%d, v%d, v%d" % (T3, y, y + 1)]:
                o.append(("v", t))
            tofs = (8 * (i // 2) + 2 * (i % 2)) * 16 + 2 * ch
            o.append(("lds", "  ds_write_b16 v13, v%d offset:%d" % (T3, tofs), ("ow", ch, 2 * i)))
            o.append(("lds", "  ds_write_b16_d16_hi v13, v%d offset:%d" % (T3, tofs + 16), ("ow", ch, 2 * i + 1)))
        return o
    for it in f_loads(0):
        emit(it)
    ZR = 24
    for i in range(4):
        A("  v_mov_b32 v%d, 0" % (ZR + i))
    A("  v_cmp_gt_u32 vcc, 128, v0")
    A("  s_and_saveexec_b64 s[68:69], vcc")
    A("  v_lshrrev_b32 v14, 3, v0")
    A("  v_mul_u32_u24 v14, %d, v14" % CS)
    A("  v_and_b32 v21, 7, v0")
    A("  v_lshl_add_u32 v14, v21, 4, v14")
    A("  ds_write_b128 v14, %s offset:%d" % (vr(ZR, 4), 4096))
    A("  s_mov_b64 exec, s[68:69]")
    A("  v_lshlrev_b32 v14, 4, v0")
    A("  v_add_u32 v14, %d, v14" % PL0)
    A("  ds_write_b128 v14, %s offset:%d" % (vr(ZR, 4), 0))
    A("  ds_write_b128 v14, %s offset:%d" % (vr(ZR, 4), PL1 - PL0))
    A("  v_cmp_gt_u32 vcc, %d, v0" % (279 - 256))
    A("  s_and_saveexec_b64 s[68:69], vcc")
    A("  ds_write_b128 v14, %s offset:%d" % (vr(ZR, 4), 4096))
    A("  ds_write_b128 v14, %s offset:%d" % (vr(ZR, 4), PL1 - PL0 + 4096))
    A("  s_mov_b64 exec, s[68:69]")
    for it in f_build(0):
        emit(it)
    for it in f_loads(1) + f_epi_loads(0):
        emit(it)
    A("  s_waitcnt lgkmcnt(0)")
    st["done"] = len(issued) - 1
    A("  s_barrier")
    NR = 16
    def a_reg(ch, crel):
        return AF + 4 * ((ch * 34 + crel + 3) % NR)
    def b_reg(dd, ks):
        return BF + 16 * (dd % 2) + 4 * ks
    def rdA(ch, c):
        return ("lds", "  ds_read_b128 %s, v%d offset:%d" % (vr(a_reg(ch, c), 4), 5 if ch % 2 == 0 else 15, 32 * (30 - c)), ("A", ch, c))
    def rdB(ch, dd, ks):
        return ("lds", "  ds_read_b128 %s, v%d offset:%d" % (vr(b_reg(dd, ks), 4), 6 if ch % 2 == 0 else 16, (7 - dd) * 144 + 32 * ks), ("B", ch, dd, ks))
    def reads_for(ch, dd):
        if dd == 0:
            return [rdB(ch, 0, 0), rdA(ch, 0), rdA(ch, 2), rdB(ch, 0, 1), rdA(ch, -1), rdA(ch, 1), rdB(ch, 0, 2), rdA(ch, -2), rdB(ch, 0, 3), rdA(ch, -3)]
        c = 4 * dd
        return [rdB(ch, dd, 0), rdA(ch, c), rdA(ch, c + 2), rdB(ch, dd, 1), rdA(ch, c - 1), rdA(ch, c + 1), rdB(ch, dd, 2), rdB(ch, dd, 3)]
    for it in reads_for(0, 0):
        emit(it)
    for ch in range(8):
        if "stamp" in FL:
            stamp(); st["done"] = len(issued) - 1
        acc0 = 32 * (ch % 2)
        fill = {}
        def sched(items, lo, hi):
            n = len(items)
            for i, it in enumerate(items):
                fill.setdefault(lo + (i * (hi - lo)) // max(n, 1), []).append(it)
        if ch > 0:
            sched(f_red(ch - 1), 6, 14)
        sched(f_build(ch + 1), 16, 30)
        if ch > 0:
            sched(f_epi(ch - 1), 24, 46)
        sched(f_loads(ch + 2) + (f_epi_loads(ch + 1) if ch < 7 else []), 48, 56)
        for dd in range(8):
            if dd < 7:
                pf = reads_for(ch, dd + 1)
            elif ch < 7:
                pf = reads_for(ch + 1, 0)
            else:
                pf = []
            k = 0
            for ks in range(4):
                for mt in range(2):
                    slot = 2 * ks + mt
                    c = 4 * dd + 2 * mt - ks
                    need([("A", ch, c), ("B", ch, dd, ks)])
                    acc = "a[%d:%d]" % (acc0 + 16 * mt, acc0 + 16 * mt + 15)
                    srcc = "0" if (dd == 0 and ks == 0) else acc
                    A("  v_mfma_f32_32x32x16_bf16 %s, %s, %s, %s" % (acc, vr(a_reg(ch, c), 4), vr(b_reg(dd, ks), 4), srcc))
                    quota = -(-len(pf) * (slot + 1) // 8)
                    while k < quota:
                        emit(pf[k]); k += 1
                    for it in fill.get(8 * dd + slot, []):
                        emit(it)
            if dd == 1:
                if ch > 0:
                    need([("R", ch - 1, i) for i in range(8)])
                A("  s_barrier")
            if dd == 5:
                tags = [t for t in issued if t[0] in ("bw", "rr", "ow")]
                if tags:
                    need(tags)
                A("  s_barrier")
    A("  s_nop 7")
    A("  s_nop 3")
    for it in f_red(7):
        emit(it)
    A("  s_waitcnt lgkmcnt(0)")
    st["done"] = len(issued) - 1
    A("  s_barrier")
    for it in f_epi(7):
        emit(it)
    A("  s_waitcnt lgkmcnt(0)")
    A("  s_barrier")
    stamp()
    A("  v_lshlrev_b32 v14, 4, v0")
    A("  v_lshrrev_b32 v21, 6, v0")
    A("  v_lshl_add_u32 v14, v21, 4, v14")
    A("  v_add_u32 v14, %d, v14" % OUTS)
    for i in range(8):
        A("  ds_read_b128 %s, v14 offset:%d" % (vr(96 + 4 * i, 4), i * (256 * 16 + 64)))
    A("  s_lshl_b32 s3, s41, 11")
    A("  s_lshl_b32 s74, s42, 1")
    A("  s_add_u32 s3, s3, s74")
    A("  v_lshlrev_b32 v21, 12, v0")
    A("  v_add_u32 v21, s3, v21")
    for i in range(8):
        A("  s_waitcnt lgkmcnt(%d)" % (7 - i))
        A("  v_add_u32 v14, 0x%x, v21" % (i * 256 * 4096))
        A("  buffer_store_dwordx4 %s, v14, s[60:63], 0 offen" % vr(96 + 4 * i, 4))
    if "stamp" in FL:
        A("  s_waitcnt vmcnt(0)")
        stamp()
        A("  v_cmp_gt_u32 vcc, 64, v0")
        A("  s_cbranch_vccz L_k2_end")
        stamp_flush("L_k2_end")
    A("L_k2_end:")
    A("  s_endpgm")

def kd2(name, vgpr, agpr):
    A(".p2align 6")
    A(".amdhsa_kernel %s" % name)
    A("  .amdhsa_next_free_vgpr %d" % (vgpr + agpr))
    A("  .amdhsa_next_free_sgpr 102")
    A("  .amdhsa_accum_offset %d" % vgpr)
    A("  .amdhsa_group_segment_fixed_size 0")
    A("  .amdhsa_kernarg_size 128")
    A("  .amdhsa_user_sgpr_count 2")
    A("  .amdhsa_user_sgpr_kernarg_segment_ptr 1")
    A("  .amdhsa_system_sgpr_workgroup_id_x 1")
    A("  .amdhsa_float_denorm_mode_32 3")
    A(".end_amdhsa_kernel")

def kd(name, vgpr, sgpr=102):
    A(".p2align 6")
    A(".amdhsa_kernel %s" % name)
    A("  .amdhsa_next_free_vgpr %d" % vgpr)
    A("  .amdhsa_next_free_sgpr %d" % sgpr)
    A("  .amdhsa_accum_offset %d" % ((vgpr + 3) // 4 * 4))
    A("  .amdhsa_group_segment_fixed_size 0")
    A("  .amdhsa_kernarg_size 128")
    A("  .amdhsa_user_sgpr_count 2")
    A("  .amdhsa_user_sgpr_kernarg_segment_ptr 1")
    A("  .amdhsa_system_sgpr_workgroup_id_x 1")
    A("  .amdhsa_float_denorm_mode_32 3")
    A(".end_amdhsa_kernel")

def main():
    ref = open(OUT + ".ref").read().split("\n")
    for ln in ref:
        if ln.startswith("; Override") or ln.startswith("; grid=") or ln.startswith("; @launch"):
            continue
        if ln.startswith(";"):
            A(ln)
        else:
            break
    A("; @launch kernel=prep_kernel grid=(2560,1,1) block=(128,1,1) lds=%d" % K1_LDS)
    A("; @launch kernel=conv_kernel grid=(256,1,1) block=(%d,1,1) lds=%d" % (512 if 'old2' in FL else 256, K2_LDS))
    A('.amdgcn_target "amdgcn-amd-amdhsa--gfx950"')
    A(".text")
    k1()
    k1_kgen()
    k2i() if 'old2' not in FL else k2()
    A('.section .rodata,"a"')
    kd("prep_kernel", 232 if "stamp1" in FL else 128)
    kd("conv_kernel", 232) if 'old2' in FL else kd2("conv_kernel", 240, 64)
    open(OUTW, "w").write("\n".join(L) + "\n")
    print("wrote", OUT, len(L), "lines; K2_LDS", K2_LDS)

main()
```

```python
import sys, os
FL = set(os.environ.get("FL","").split(","))

NAME = "concat_heads__ssm_conv_s4d__ssm_conv_h3__prompt"
OUT = "cdna_kernels/%s.s" % NAME
OUTW = os.environ.get("OUTW", OUT)

L = []
def A(s=""):
    L.append(s)

def vr(a, n=1):
    return "v%d" % a if n == 1 else "v[%d:%d]" % (a, a + n - 1)
def sr(a, n=1):
    return "s%d" % a if n == 1 else "s[%d:%d]" % (a, a + n - 1)

LOG2E = 0x3fb8aa3b
INV2PI = 0x3e22f983
MB = 1 << 20
WS_U, WS_KV, WS_Q, WS_KA = 0, 4 * MB, 8 * MB, 12 * MB

P_U, P_LAR, P_AIM, P_CR, P_CI, P_LDT, P_DSK, P_Q, P_K, P_V, P_SH, P_SSK, P_SSD, P_OUT, P_DBG, P_WS = [8 + 2 * i for i in range(16)]

def hstamp():
    if "stamph" in FL:
        FL.add("stamp"); stamp(); FL.discard("stamp")

def stamp():
    if "stamp" not in FL:
        return
    A("  s_memtime s[80:81]")
    A("  s_waitcnt lgkmcnt(0)")
    A("  s_mov_b32 m0, s82")
    A("  s_nop 0")
    A("  v_writelane_b32 v230, s80, m0")
    A("  s_add_u32 s82, s82, 1")

def stamp_init():
    if "stamp" not in FL and "stamph" not in FL:
        return
    A("  s_mov_b32 s82, 0")
    A("  v_mov_b32 v230, 0")

def stamp_flush(lbl):
    if "stamp" not in FL:
        return
    A("  s_cmp_lg_u32 s2, 0")
    A("  s_cbranch_scc1 %s" % lbl)
    srd(84, P_DBG, 256)
    A("  v_lshlrev_b32 v231, 2, v0")
    A("  buffer_store_dword v230, v231, s[84:87], 0 offen")

def load_kernargs():
    A("  s_load_dwordx16 s[8:23], s[0:1], 0")
    A("  s_load_dwordx16 s[24:39], s[0:1], 64")
    A("  s_waitcnt lgkmcnt(0)")

def srd(dst, ptr, nbytes, add=0):
    if add:
        A("  s_add_u32 s%d, s%d, 0x%x" % (dst, ptr, add))
        A("  s_addc_u32 s%d, s%d, 0" % (dst + 1, ptr + 1))
        A("  s_and_b32 s%d, s%d, 0xffff" % (dst + 1, dst + 1))
    else:
        A("  s_mov_b32 s%d, s%d" % (dst, ptr))
        A("  s_and_b32 s%d, s%d, 0xffff" % (dst + 1, ptr + 1))
    A("  s_mov_b32 s%d, 0x%x" % (dst + 2, nbytes))
    A("  s_mov_b32 s%d, 0x00020000" % (dst + 3))

def cmul(d, e, w, t):
    A("  v_pk_mul_f32 %s, %s, %s op_sel:[1,1] op_sel_hi:[1,0]" % (vr(t, 2), vr(e, 2), vr(w, 2)))
    A("  v_pk_fma_f32 %s, %s, %s, %s op_sel:[0,0,0] op_sel_hi:[0,1,1] neg_lo:[0,0,1]" % (vr(d, 2), vr(e, 2), vr(w, 2), vr(t, 2)))

K1_LDS = 8448 + 128 * 48
def tile_coords(tile_sreg, tb_s, cb_s):
    A("  s_and_b32 s41, s%d, 511" % tile_sreg)
    A("  s_lshr_b32 s%d, s41, 4" % tb_s)
    A("  s_and_b32 s%d, s41, 15" % cb_s)

def tile_src_off(tb_s, cb_s, vdst):
    A("  s_lshl_b32 s3, s%d, 17" % tb_s)
    A("  s_lshl_b32 s41, s%d, 7" % cb_s)
    A("  s_add_u32 s3, s3, s41")
    A("  v_lshrrev_b32 v1, 3, v0")
    A("  v_and_b32 v2, 7, v0")
    A("  v_lshlrev_b32 v%d, 13, v1" % vdst)
    A("  v_lshl_add_u32 v%d, v2, 4, v%d" % (vdst, vdst))
    A("  v_add_u32 v%d, s3, v%d" % (vdst, vdst))

def tile_store(R0, tb_s, cb_s, dst_srd):
    A("  v_lshrrev_b32 v1, 3, v0")
    A("  v_and_b32 v2, 7, v0")
    A("  v_mul_u32_u24 v6, %d, v2" % (8 * 144))
    A("  v_lshl_add_u32 v6, v1, 3, v6")
    for d in range(4):
        T0 = 8 + 4 * (d % 2)
        A("  v_perm_b32 v%d, v%d, v%d, s101" % (T0, R0 + 4 + d, R0 + d))
        A("  v_perm_b32 v%d, v%d, v%d, s101" % (T0 + 1, R0 + 12 + d, R0 + 8 + d))
        A("  v_perm_b32 v%d, v%d, v%d, s100" % (T0 + 2, R0 + 4 + d, R0 + d))
        A("  v_perm_b32 v%d, v%d, v%d, s100" % (T0 + 3, R0 + 12 + d, R0 + 8 + d))
        A("  ds_write_b64 v6, %s offset:%d" % (vr(T0, 2), 144 * (2 * d)))
        A("  ds_write_b64 v6, %s offset:%d" % (vr(T0 + 2, 2), 144 * (2 * d + 1)))
    A("  s_waitcnt lgkmcnt(0)")
    A("  s_barrier")
    A("  v_mul_u32_u24 v6, 144, v1")
    A("  v_lshl_add_u32 v6, v2, 4, v6")
    for it in range(4):
        A("  ds_read_b128 %s, v6 offset:%d" % (vr(R0 + 4 * it, 4), 16 * 144 * it))
    A("  s_lshl_b32 s3, s%d, 18" % cb_s)
    A("  s_lshl_b32 s41, s%d, 7" % tb_s)
    A("  s_add_u32 s3, s3, s41")
    A("  v_lshlrev_b32 v7, 12, v1")
    A("  v_lshl_add_u32 v7, v2, 4, v7")
    A("  v_add_u32 v7, s3, v7")
    for it in range(4):
        A("  s_waitcnt lgkmcnt(%d)" % (3 - it))
        A("  v_add_u32 v4, 0x%x, v7" % (16 * 4096 * it))
        A("  buffer_store_dwordx4 %s, v4, s[%d:%d], 0 offen" % (vr(R0 + 4 * it, 4), dst_srd, dst_srd + 3))
    A("  s_barrier")

def k1():
    A(".globl prep_kernel")
    A(".p2align 8")
    A(".type prep_kernel,@function")
    A("prep_kernel:")
    A("  s_cmp_lt_u32 s2, 2560")
    A("  s_cbranch_scc0 L_k1_end")
    load_kernargs()
    A("  s_mov_b32 s64, 0xffff0000")
    A("  s_mov_b32 s101, 0x05040100")
    A("  s_mov_b32 s100, 0x07060302")
    A("  s_cmp_lt_u32 s2, 1024")
    A("  s_cbranch_scc1 %s" % ("L_k1_end" if "nokgen" in FL else "L_kgen"))
    if "notr" in FL:
        A("  s_branch L_k1_end")
    A("  s_sub_u32 s65, s2, 1024")
    A("  s_lshr_b32 s40, s65, 9")
    tile_coords(65, 66, 67)
    tile_src_off(66, 67, 3)
    KR, VR_, WR = 32, 60, 76
    A("  s_lshl_b32 s3, s40, 22")
    A("  s_add_u32 s68, s%d, s3" % P_WS)
    A("  s_addc_u32 s69, s%d, 0" % (P_WS + 1))
    A("  s_and_b32 s69, s69, 0xffff")
    A("  s_mov_b32 s70, 0x%x" % (4 * MB))
    A("  s_mov_b32 s71, 0x00020000")
    A("  s_cmp_eq_u32 s40, 1")
    A("  s_cbranch_scc1 L_k1_ldkv")
    A("  s_cmp_eq_u32 s40, 0")
    A("  s_cselect_b32 s72, s%d, s%d" % (P_U, P_Q))
    A("  s_cselect_b32 s73, s%d, s%d" % (P_U + 1, P_Q + 1))
    A("  s_and_b32 s73, s73, 0xffff")
    A("  s_mov_b32 s74, 0x%x" % (4 * MB))
    A("  s_mov_b32 s75, 0x00020000")
    for i in range(4):
        A("  v_add_u32 v4, %d, v3" % (2048 * i))
        A("  buffer_load_dwordx4 %s, v4, s[72:75], 0 offen" % vr(16 + 4 * i, 4))
    A("  s_waitcnt vmcnt(0)")
    A("  s_branch L_k1_st")
    A("L_k1_ldkv:")
    srd(76, P_K, 4 * MB)
    srd(80, P_V, 4 * MB)
    srd(84, P_SH, 8192)
    for i in range(7):
        off = 2048 * (i - 3)
        if off < 0:
            A("  v_subrev_u32 v4, %d, v3" % (-off))
        else:
            A("  v_add_u32 v4, %d, v3" % off)
        A("  buffer_load_dwordx4 %s, v4, s[76:79], 0 offen" % vr(KR + 4 * i, 4))
    for i in range(4):
        A("  v_add_u32 v4, %d, v3" % (2048 * i))
        A("  buffer_load_dwordx4 %s, v4, s[80:83], 0 offen" % vr(VR_ + 4 * i, 4))
    A("  s_lshl_b32 s3, s67, 9")
    A("  v_lshlrev_b32 v5, 6, v2")
    A("  v_add_u32 v5, s3, v5")
    for i in range(4):
        A("  buffer_load_dwordx4 %s, v5, s[84:87], 0 offen offset:%d" % (vr(WR + 4 * i, 4), 16 * i))
    A("  s_waitcnt vmcnt(0)")
    R0 = 16
    KF, WF, VF, AC, PT, TM = 96, 112, 120, 122, 124, 126
    def rnd(p):
        A("  v_cvt_pk_bf16_f32 v%d, v%d, v%d" % (TM, p, p + 1))
        A("  v_lshlrev_b32 v%d, 16, v%d" % (p, TM))
        A("  v_and_b32 v%d, s64, v%d" % (p + 1, TM))
    for d in range(4):
        for h in range(2):
            e = 2 * d + h
            A("  v_lshlrev_b32 v%d, 16, v%d" % (WF + 0 + h, WR + 2 * e))
            A("  v_and_b32 v%d, s64, v%d" % (WF + 2 + h, WR + 2 * e))
            A("  v_lshlrev_b32 v%d, 16, v%d" % (WF + 4 + h, WR + 2 * e + 1))
            A("  v_and_b32 v%d, s64, v%d" % (WF + 6 + h, WR + 2 * e + 1))
        for i in range(7):
            A("  v_lshlrev_b32 v%d, 16, v%d" % (KF + 2 * i, KR + 4 * i + d))
            A("  v_and_b32 v%d, s64, v%d" % (KF + 2 * i + 1, KR + 4 * i + d))
        for rho in range(4):
            A("  v_pk_mul_f32 %s, %s, %s" % (vr(AC, 2), vr(KF + 2 * rho, 2), vr(WF + 6, 2)))
            rnd(AC)
            for a in (2, 1, 0):
                A("  v_pk_mul_f32 %s, %s, %s" % (vr(PT, 2), vr(KF + 2 * (rho + 3 - a), 2), vr(WF + 2 * a, 2)))
                rnd(PT)
                A("  v_pk_add_f32 %s, %s, %s" % (vr(AC, 2), vr(AC, 2), vr(PT, 2)))
                rnd(AC)
            A("  v_lshlrev_b32 v%d, 16, v%d" % (VF, VR_ + 4 * rho + d))
            A("  v_and_b32 v%d, s64, v%d" % (VF + 1, VR_ + 4 * rho + d))
            A("  v_pk_mul_f32 %s, %s, %s" % (vr(AC, 2), vr(AC, 2), vr(VF, 2)))
            A("  v_cvt_pk_bf16_f32 v%d, v%d, v%d" % (R0 + 4 * rho + d, AC, AC + 1))
    A("L_k1_st:")
    tile_store(16, 66, 67, 68)
    A("  s_branch L_k1_end")

def k1_kgen():
    A("L_kgen:")
    if "stamp1" in FL:
        FL.add("stamp")
        stamp_init(); stamp()
    srd(40, P_LAR, 262144)
    srd(44, P_AIM, 262144)
    srd(48, P_CR, 262144)
    srd(52, P_CI, 262144)
    srd(56, P_LDT, 2048)
    srd(60, P_WS, 4 * MB, WS_KA)
    WB = 4160
    A("  v_and_b32 v8, 63, v0")
    A("  v_lshrrev_b32 v9, 6, v0")
    A("  v_mul_u32_u24 v10, %d, v9" % WB)
    A("  v_and_b32 v12, 15, v8")
    A("  v_lshrrev_b32 v13, 4, v8")
    PB = 8448
    A("  s_lshl_b32 s3, s2, 8")
    A("  v_lshlrev_b32 v1, 1, v0")
    A("  v_add_u32 v1, s3, v1")
    A("  s_lshl_b32 s3, s2, 1")
    A("  v_mov_b32 v2, s3")
    A("  buffer_load_ushort v3, v1, s[40:43], 0 offen")
    A("  buffer_load_ushort v4, v1, s[44:47], 0 offen")
    A("  buffer_load_ushort v5, v1, s[48:51], 0 offen")
    A("  buffer_load_ushort v6, v1, s[52:55], 0 offen")
    A("  buffer_load_ushort v7, v2, s[56:59], 0 offen")
    PJ = 14
    A("  v_cvt_f32_u32 v%d, v12" % PJ)
    A("  s_waitcnt vmcnt(0)")
    for r in (3, 4, 5, 6, 7):
        A("  v_lshlrev_b32 v%d, 16, v%d" % (r, r))
    A("  v_mul_f32 v7, 0x%x, v7" % LOG2E)
    A("  v_mul_f32 v3, 0x%x, v3" % LOG2E)
    A("  v_exp_f32 v7, v7")
    A("  v_exp_f32 v3, v3")
    A("  s_nop 0")
    A("  v_cvt_pk_bf16_f32 v15, v7, v3")
    A("  v_lshlrev_b32 v7, 16, v15")
    A("  v_and_b32 v3, s64, v15")
    Z, Cc, E2, E4, E8, TPp, Tt = 20, 24, 26, 28, 30, 32, 34
    A("  v_mul_f32 v20, v3, v7")
    A("  v_mul_f32 v21, v4, v7")
    A("  v_mov_b32 v22, 0")
    A("  v_mov_b32 v23, 0")
    A("  v_mul_f32 v24, v5, v7")
    A("  v_mul_f32 v25, v6, v7")
    A("  v_add_f32 v24, v24, v24")
    A("  v_add_f32 v25, v25, v25")
    A("  v_max_f32 v36, abs(v24), abs(v25)")
    for pat in (0x041F, 0x081F, 0x101F, 0x201F, 0x401F):
        A("  ds_swizzle_b32 v37, v36 offset:0x%04X" % pat)
        A("  s_waitcnt lgkmcnt(0)")
        A("  v_max_f32 v36, v36, v37")
    A("  s_nop 0")
    A("  v_readlane_b32 s66, v36, 0")
    A("  v_readlane_b32 s67, v36, 32")
    A("  s_nop 1")
    A("  s_max_u32 s66, s66, s67")
    A("  s_and_b32 s66, s66, 0x7f800000")
    A("  s_sub_u32 s67, 0x7f000000, s66")
    A("  v_mul_f32 v24, s67, v24")
    A("  v_mul_f32 v25, s67, v25")
    for d, pp in ((E2, 256.0), (E4, 512.0), (E8, 1024.0)):
        A("  v_mul_f32 v%d, 0x%08x, v20" % (TPp, f32bits(pp)))
        A("  v_mul_f32 v%d, 0x%08x, v21" % (TPp + 1, f32bits(pp)))
        A("  v_mul_f32 v%d, 0x%x, v%d" % (TPp, LOG2E | 0x80000000, TPp))
        A("  v_mul_f32 v%d, 0x%x, v%d" % (TPp + 1, INV2PI, TPp + 1))
        A("  v_exp_f32 v%d, v%d" % (TPp, TPp))
        A("  v_fract_f32 v%d, v%d" % (TPp + 1, TPp + 1))
        A("  v_cos_f32 v%d, v%d" % (d, TPp + 1))
        A("  v_sin_f32 v%d, v%d" % (d + 1, TPp + 1))
        A("  s_nop 0")
        A("  v_pk_mul_f32 %s, %s, %s op_sel_hi:[1,0]" % (vr(d, 2), vr(d, 2), vr(TPp, 2)))
        cmul(d, d, Cc, Tt)
    A("  v_mul_u32_u24 v1, 48, v0")
    A("  ds_write_b128 v1, v[20:23] offset:%d" % PB)
    A("  ds_write_b128 v1, v[24:27] offset:%d" % (PB + 16))
    A("  ds_write_b128 v1, v[28:31] offset:%d" % (PB + 32))
    A("  v_lshlrev_b32 v1, 6, v9")
    A("  v_lshl_add_u32 v1, v13, 2, v1")
    A("  v_mul_u32_u24 v1, 48, v1")
    A("  s_waitcnt lgkmcnt(0)")
    ACC = 108
    if "stamp1" in FL: stamp()
    OPA, OPB = 76, 92
    def mode_code(blk, e, R):
        PZ, PC, TP, T, Bq, X, Aq = R, R + 4, R + 12, R + 14, R + 16, R + 18, R + 20
        off = PB + 48 * (16 * blk + e)
        ld = ["  ds_read_b128 %s, v1 offset:%d" % (vr(PZ, 4), off),
              "  ds_read_b128 %s, v1 offset:%d" % (vr(PC, 4), off + 16),
              "  ds_read_b128 %s, v1 offset:%d" % (vr(PC + 4, 4), off + 32)]
        o = []
        def cm(d, a_, w):
            o.append("  v_pk_mul_f32 %s, %s, %s op_sel:[1,1] op_sel_hi:[1,0]" % (vr(T, 2), vr(a_, 2), vr(w, 2)))
            o.append("  v_pk_fma_f32 %s, %s, %s, %s op_sel:[0,0,0] op_sel_hi:[0,1,1] neg_lo:[0,0,1]" % (vr(d, 2), vr(a_, 2), vr(w, 2), vr(T, 2)))
        def pk(dst, src):
            o.append("  v_cvt_pk_f16_f32 v%d, v%d, v%d" % (dst, src, src + 1))
        o.append("  v_pk_mul_f32 %s, %s, %s op_sel_hi:[1,0]" % (vr(TP, 2), vr(PZ, 2), vr(PJ, 2)))
        o.append("  v_mul_f32 v%d, 0x%x, v%d" % (TP, LOG2E | 0x80000000, TP))
        o.append("  v_mul_f32 v%d, 0x%x, v%d" % (TP + 1, INV2PI | 0x80000000, TP + 1))
        o.append("  v_exp_f32 v%d, v%d" % (TP, TP))
        o.append("  v_fract_f32 v%d, v%d" % (TP + 1, TP + 1))
        o.append("  v_cos_f32 v%d, v%d" % (Bq, TP + 1))
        o.append("  v_sin_f32 v%d, v%d" % (Bq + 1, TP + 1))
        o.append("  s_nop 0")
        o.append("  v_pk_mul_f32 %s, %s, %s op_sel_hi:[1,0]" % (vr(Bq, 2), vr(Bq, 2), vr(TP, 2)))
        for sidx in range(4):
            pk(OPB + 4 * sidx + e, Bq)
            cm(Bq if sidx < 3 else X, Bq, Bq)
        o.append("  v_xor_b32 v%d, 0x80000000, v%d" % (X + 1, X + 1))
        for sidx in range(4):
            cm(Aq, X, PC + 2 * sidx)
            if sidx < 3:
                cm(X, X, X)
            pk(OPA + 4 * sidx + e, Aq)
        return ld, o
    RSET = (20, 44)
    seq = [(blk, e) for blk in range(4) for e in (0, 2)]
    for x in mode_code(0, 0, RSET[0])[0] + mode_code(0, 1, RSET[1])[0]:
        A(x)
    for i, (blk, e) in enumerate(seq):
        _, c0_ = mode_code(blk, e, RSET[0])
        _, c1_ = mode_code(blk, e + 1, RSET[1])
        A("  s_waitcnt lgkmcnt(0)")
        for j in range(max(len(c0_), len(c1_))):
            if j < len(c0_): A(c0_[j])
            if j < len(c1_): A(c1_[j])
        if i + 1 < len(seq):
            nb, ne = seq[i + 1]
            for x in mode_code(nb, ne, RSET[0])[0] + mode_code(nb, ne + 1, RSET[1])[0]:
                A(x)
        if e == 2:
            A("  s_nop 1")
            for sidx in range(4):
                a_ = vr(ACC + 4 * sidx, 4)
                A("  v_mfma_f32_16x16x32_f16 %s, %s, %s, %s" % (a_, vr(OPA + 4 * sidx, 4), vr(OPB + 4 * sidx, 4), "0" if blk == 0 else a_))
    A("  s_nop 7")
    A("  s_nop 1")
    for i in range(16):
        A("  v_mul_f32 v%d, s66, v%d" % (ACC + i, ACC + i))
    if "stamp1" in FL: stamp()
    A("  s_nop 7")
    A("  s_nop 3")
    A("  v_lshlrev_b32 v15, 8, v13")
    A("  v_lshl_add_u32 v15, v12, 2, v15")
    A("  v_add_u32 v15, v15, v10")
    for sidx in range(4):
        for r in range(4):
            A("  ds_write_b32 v15, v%d offset:%d" % (ACC + 4 * sidx + r, 1024 * sidx + 64 * r))
    A("  v_cmp_eq_u32 vcc, 32, v8")
    A("  v_add_u32 v16, 4096, v10")
    A("  v_add_u32 v17, 4100, v10")
    A("  s_nop 0")
    A("  v_cndmask_b32 v16, v17, v16, vcc")
    A("  ds_write_b32 v16, v%d" % (ACC + 12))
    A("  s_waitcnt lgkmcnt(0)")
    A("  s_barrier")
    A("  v_lshlrev_b32 v1, 4, v0")
    G0, G1 = 32, 48
    for e in range(16):
        A("  v_add_u32 v2, %d, v1" % e)
        A("  v_cvt_f32_u32 v3, v2")
        A("  v_cvt_pk_bf16_f32 v3, v3, v3")
        A("  v_bfe_u32 v4, v3, 7, 9")
        A("  v_and_b32 v3, 127, v3")
        A("  v_lshl_add_u32 v3, v4, 8, v3")
        A("  v_subrev_u32 v3, %d, v3" % (134 * 256))
        A("  v_cmp_gt_u32 vcc, 256, v2")
        A("  s_nop 1")
        A("  v_cndmask_b32 v3, v3, v2, vcc")
        A("  v_lshlrev_b32 v3, 2, v3")
        A("  ds_read_b32 v%d, v3" % (G0 + e))
        A("  ds_read_b32 v%d, v3 offset:%d" % (G1 + e, WB))
    A("  s_waitcnt lgkmcnt(0)")
    for e in range(16):
        A("  v_add_f32 v%d, v%d, v%d" % (G0 + e, G0 + e, G1 + e))
    for e in range(8):
        A("  v_cvt_pk_bf16_f32 v%d, v%d, v%d" % (64 + e, G0 + 2 * e, G0 + 2 * e + 1))
    A("  s_lshl_b32 s3, s2, 12")
    A("  v_lshlrev_b32 v1, 5, v0")
    A("  v_add_u32 v1, s3, v1")
    A("  buffer_store_dwordx4 v[64:67], v1, s[60:63], 0 offen")
    A("  buffer_store_dwordx4 v[68:71], v1, s[60:63], 0 offen offset:16")
    if "stamp1" in FL:
        A("  s_waitcnt vmcnt(0)")
        stamp()
        stamp_flush("L_k1_end")
        FL.discard("stamp")
    A("L_k1_end:")
    A("  s_endpgm")

import struct
def f32bits(x):
    return struct.unpack("<I", struct.pack("<f", x))[0]

CS = 4416
COPY0, COPY1 = 0, 8 * CS
PL0 = 2 * 8 * CS
PLSZ = 63 * 144
PL1 = PL0 + PLSZ
RED = PL1 + PLSZ
OUTS = RED + 32768
K2_LDS = OUTS + 2048 * 16 + 32 * 16

MDD = int(os.environ.get("MDD", "3"))
def k2():
    A(".globl conv_kernel")
    A(".p2align 8")
    A(".type conv_kernel,@function")
    A("conv_kernel:")
    A("  s_cmp_ge_u32 s2, 256")
    A("  s_cbranch_scc1 L_k2_end")
    load_kernargs()
    stamp_init(); stamp()
    A("  s_and_b32 s3, s2, 7")
    A("  s_lshr_b32 s40, s2, 3")
    A("  s_lshr_b32 s41, s40, 4")
    A("  s_and_b32 s40, s40, 15")
    A("  s_lshl_b32 s42, s3, 7")
    A("  s_lshl_b32 s40, s40, 3")
    A("  s_add_u32 s42, s42, s40")
    A("  s_lshl_b32 s3, s41, 22")
    A("  s_add_u32 s44, s%d, s3" % P_WS)
    A("  s_addc_u32 s45, s%d, 0" % (P_WS + 1))
    A("  s_and_b32 s45, s45, 0xffff")
    A("  s_mov_b32 s46, 0x%x" % (4 * MB))
    A("  s_mov_b32 s47, 0x00020000")
    A("  s_add_u32 s48, s%d, 0x%x" % (P_WS, WS_KA))
    A("  s_addc_u32 s49, s%d, 0" % (P_WS + 1))
    A("  s_cmp_eq_u32 s41, 0")
    A("  s_cselect_b32 s48, s48, s%d" % P_SSK)
    A("  s_cselect_b32 s49, s49, s%d" % (P_SSK + 1))
    A("  s_and_b32 s49, s49, 0xffff")
    A("  s_mov_b32 s50, 0x%x" % (4 * MB))
    A("  s_mov_b32 s51, 0x00020000")
    srd(52, P_WS, 4 * MB, WS_Q)
    A("  s_cmp_eq_u32 s41, 0")
    A("  s_cselect_b32 s56, s%d, s%d" % (P_DSK, P_SSD))
    A("  s_cselect_b32 s57, s%d, s%d" % (P_DSK + 1, P_SSD + 1))
    A("  s_and_b32 s57, s57, 0xffff")
    A("  s_mov_b32 s58, 2048")
    A("  s_mov_b32 s59, 0x00020000")
    srd(60, P_OUT, 8 * MB)
    A("  s_mov_b32 s64, 0xffff0000")
    A("  s_mov_b32 s65, 0x0000ffff")
    S_CH, S_CNT, S_DC, S_DP = 70, 71, 72, 73
    A("  s_mov_b32 s%d, s42" % S_CH)
    A("  s_mov_b32 s%d, 0" % S_CNT)
    A("  s_mov_b32 s%d, %d" % (S_DC, COPY1 - COPY0))
    A("  s_mov_b32 s%d, %d" % (S_DP, PL1 - PL0))
    A("  v_mov_b32 v229, v0")
    A("  v_lshrrev_b32 v2, 6, v0")
    A("  s_nop 0")
    A("  v_readfirstlane_b32 s75, v2")
    A("  v_and_b32 v0, 255, v0")
    A("  v_and_b32 v1, 63, v0")
    A("  v_bfe_u32 v2, v0, 6, 2")
    A("  v_and_b32 v3, 31, v0")
    A("  v_bfe_u32 v4, v0, 5, 1")
    A("  s_cmp_ge_u32 s75, 4")
    A("  s_cbranch_scc1 L_k2_helper")
    ACC0, AF, BF = 32, 96, 160
    A("  v_and_b32 v14, 7, v3")
    A("  v_sub_u32 v14, 7, v14")
    A("  v_mul_u32_u24 v5, %d, v14" % CS)
    A("  v_lshrrev_b32 v14, 3, v3")
    A("  v_sub_u32 v14, v4, v14")
    A("  v_lshlrev_b32 v14, 4, v14")
    A("  v_add_u32 v5, v5, v14")
    A("  v_add_u32 v5, %d, v5" % (COPY0 + 16 * 255 - 32 * 30))
    A("  v_lshlrev_b32 v14, 10, v2")
    A("  v_sub_u32 v5, v5, v14")
    A("  v_lshlrev_b32 v14, 3, v2")
    A("  v_sub_u32 v14, v3, v14")
    A("  v_add_u32 v14, 24, v14")
    A("  v_mul_u32_u24 v6, 144, v14")
    A("  v_lshl_add_u32 v6, v4, 4, v6")
    A("  v_add_u32 v6, %d, v6" % PL0)
    A("  v_lshlrev_b32 v10, 11, v2")
    A("  v_lshl_add_u32 v10, v1, 4, v10")
    A("  v_add_u32 v10, %d, v10" % RED)
    A("  s_barrier")
    NR = 16
    VA2, VB2 = 15, 16
    A("  v_add_u32 v%d, %d, v5" % (VA2, COPY1 - COPY0))
    A("  v_add_u32 v%d, %d, v6" % (VB2, PL1 - PL0))
    issued = []
    st = {"done": -1}
    def lds(text, tag):
        A(text); issued.append(tag)
    def need(tags):
        idx = max(issued.index(t) for t in tags)
        if idx > st["done"]:
            n = len(issued) - 1 - idx
            assert n <= 15, n
            A("  s_waitcnt lgkmcnt(%d)" % n)
            st["done"] = idx
    def a_reg(ch, crel):
        return AF + 4 * ((ch * 34 + crel + 3) % NR)
    def a_off(crel):
        return 32 * (30 - crel)
    def b_reg(dd, ks):
        return BF + 16 * (dd % 2) + 4 * ks
    def b_off(dd, ks):
        return (7 - dd) * 144 + 32 * ks
    def rdA(ch, c):
        return ("  ds_read_b128 %s, v%d offset:%d" % (vr(a_reg(ch, c), 4), 5 if ch % 2 == 0 else VA2, a_off(c)), ("A", ch, c))
    def rdB(ch, dd, ks):
        return ("  ds_read_b128 %s, v%d offset:%d" % (vr(b_reg(dd, ks), 4), 6 if ch % 2 == 0 else VB2, b_off(dd, ks)), ("B", ch, dd, ks))
    def reads_for(ch, dd):
        if dd == 0:
            return [rdB(ch, 0, 0), rdA(ch, 0), rdA(ch, 2), rdB(ch, 0, 1), rdA(ch, -1), rdA(ch, 1), rdB(ch, 0, 2), rdA(ch, -2), rdB(ch, 0, 3), rdA(ch, -3)]
        c = 4 * dd
        return [rdB(ch, dd, 0), rdA(ch, c), rdA(ch, c + 2), rdB(ch, dd, 1), rdA(ch, c - 1), rdA(ch, c + 1), rdB(ch, dd, 2), rdB(ch, dd, 3)]
    for x in reads_for(0, 0):
        lds(*x)
    for ch in range(9):
        if "stamp" in FL:
            stamp(); st["done"] = len(issued) - 1
        par = ch % 2
        acc0 = ACC0 + 32 * par
        pacc0 = ACC0 + 32 * (1 - par)
        redw = []
        if ch > 0:
            for Q in range(4):
                redw.append(("  ds_write_b128 v10, %s offset:%d" % (vr(pacc0 + 8 * Q, 4), Q * 8192), ("R", ch, 2 * Q)))
                redw.append(("  ds_write_b128 v10, %s offset:%d" % (vr(pacc0 + 8 * Q + 4, 4), Q * 8192 + 1024), ("R", ch, 2 * Q + 1)))
        if ch == 8:
            A("  s_nop 7")
            A("  s_nop 3")
            for x in redw:
                lds(*x)
            A("  s_waitcnt lgkmcnt(0)")
            A("  s_barrier")
            break
        for dd in range(8):
            if dd < 7:
                pf = reads_for(ch, dd + 1)
            elif ch < 7:
                pf = reads_for(ch + 1, 0)
            else:
                pf = []
            if dd == 1:
                pf = pf + redw
            k = 0
            for ks in range(4):
                for mt in range(2):
                    c = 4 * dd + 2 * mt - ks
                    need([("A", ch, c), ("B", ch, dd, ks)])
                    acc = vr(acc0 + 16 * mt, 16)
                    srcc = "0" if (dd == 0 and ks == 0) else acc
                    A("  v_mfma_f32_32x32x16_bf16 %s, %s, %s, %s" % (acc, vr(a_reg(ch, c), 4), vr(b_reg(dd, ks), 4), srcc))
                    slot = 2 * ks + mt
                    quota = -(-len(pf) * (slot + 1) // 8)
                    while k < quota:
                        lds(*pf[k]); k += 1
            if dd == MDD:
                if redw:
                    need([t for _, t in redw])
                A("  s_barrier")
        A("  s_barrier")
    A("  s_branch L_k2_final")
    A("L_k2_helper:")
    if "prio" in FL:
        A("  s_setprio 3")
    A("  v_cmp_eq_u32 s[66:67], 0, v0")
    A("  v_lshlrev_b32 v7, 4, v0")
    A("  v_lshrrev_b32 v14, 3, v0")
    A("  v_mul_u32_u24 v8, 144, v14")
    A("  v_and_b32 v14, 7, v0")
    A("  v_lshl_add_u32 v8, v14, 4, v8")
    A("  v_add_u32 v8, %d, v8" % (PL0 + 31 * 144))
    A("  v_sub_u32 v9, 255, v0")
    A("  v_lshlrev_b32 v9, 4, v9")
    A("  v_lshlrev_b32 v11, 13, v2")
    A("  v_lshl_add_u32 v11, v1, 4, v11")
    A("  v_add_u32 v11, %d, v11" % RED)
    A("  v_lshlrev_b32 v14, 6, v3")
    A("  v_lshl_add_u32 v14, v2, 4, v14")
    A("  v_lshl_add_u32 v14, v4, 2, v14")
    A("  v_lshlrev_b32 v12, 1, v14")
    A("  v_lshlrev_b32 v13, 4, v14")
    A("  v_lshl_add_u32 v13, v3, 4, v13")
    A("  v_add_u32 v13, %d, v13" % OUTS)
    CUR, PRV, KPL = 168, 172, 176
    ROT, ROT2, MIX, MIX2 = 180, 188, 196, 204
    EX, EQ, ED = 212, 216, 220
    def issue_loads(add):
        A("  s_add_u32 s74, s%d, %d" % (S_CH, add))
        A("  s_lshl_b32 s74, s74, 12")
        A("  v_add_u32 v14, s74, v7")
        A("  v_subrev_u32 v15, 16, v14")
        A("  buffer_load_dwordx4 %s, v14, s[44:47], 0 offen" % vr(CUR, 4))
        A("  buffer_load_dwordx4 %s, v15, s[44:47], 0 offen" % vr(PRV, 4))
        A("  buffer_load_dwordx4 %s, v14, s[48:51], 0 offen" % vr(KPL, 4))
    def issue_epi():
        A("  s_lshl_b32 s74, s%d, 12" % S_CH)
        A("  v_add_u32 v14, s74, v12")
        A("  buffer_load_dwordx2 %s, v14, s[44:47], 0 offen" % vr(EX, 2))
        A("  buffer_load_dwordx2 %s, v14, s[44:47], 0 offen offset:16" % vr(EX + 2, 2))
        A("  buffer_load_dwordx2 %s, v14, s[52:55], 0 offen" % vr(EQ, 2))
        A("  buffer_load_dwordx2 %s, v14, s[52:55], 0 offen offset:16" % vr(EQ + 2, 2))
        A("  s_lshl_b32 s74, s%d, 1" % S_CH)
        A("  v_mov_b32 v14, s74")
        A("  buffer_load_ushort v%d, v14, s[56:59], 0 offen" % ED)
    def build():
        if "nobuild" in FL:
            return
        for i in range(4):
            A("  v_cndmask_b32 v%d, v%d, 0, s[66:67]" % (PRV + i, PRV + i))
        W = [PRV + 0, PRV + 1, PRV + 2, PRV + 3, CUR + 0, CUR + 1, CUR + 2, CUR + 3]
        A("  ds_write_b128 v8, %s" % vr(KPL, 4))
        for k in range(7):
            A("  v_alignbit_b32 v%d, v%d, v%d, 16" % (ROT + k, W[7 - k], W[7 - k]))
            A("  v_bfi_b32 v%d, s65, v%d, v%d" % (MIX + k, W[7 - k], W[6 - k]))
        for k in range(1, 7):
            A("  v_mov_b32 v%d, v%d" % (ROT2 + k - 1, ROT + k))
            A("  v_mov_b32 v%d, v%d" % (MIX2 + k - 1, MIX + k))
        for sg in range(4):
            r = ROT + sg if sg % 2 == 0 else ROT2 + sg - 1
            m = MIX + sg if sg % 2 == 0 else MIX2 + sg - 1
            A("  ds_write_b128 v9, %s offset:%d" % (vr(r, 4), (2 * sg) * CS))
            if "halfbuild" not in FL:
                A("  ds_write_b128 v9, %s offset:%d" % (vr(m, 4), (2 * sg + 1) * CS))
        A("  v_add_u32 v9, s%d, v9" % S_DC)
        A("  v_add_u32 v8, s%d, v8" % S_DP)
        A("  s_sub_u32 s%d, 0, s%d" % (S_DC, S_DC))
        A("  s_sub_u32 s%d, 0, s%d" % (S_DP, S_DP))
    SM = 96
    EX2, EQ2, ED2 = 144, 148, 152
    def epilogue(EX, EQ, ED):
        if "noepi" in FL:
            return
        for src in range(4):
            A("  ds_read_b128 %s, v11 offset:%d" % (vr(SM + 8 * src, 4), src * 2048))
            A("  ds_read_b128 %s, v11 offset:%d" % (vr(SM + 8 * src + 4, 4), src * 2048 + 1024))
        A("  v_lshlrev_b32 v%d, 16, v%d" % (ED, ED))
        A("  v_mov_b32 v%d, v%d" % (ED + 1, ED))
        for i in range(4):
            A("  v_mov_b32 v%d, 0x3f803f80" % (T1_ + 6))
            A("  v_cndmask_b32 v%d, v%d, v%d, s[76:77]" % (EQ + i, EQ + i, T1_ + 6))
        A("  s_waitcnt lgkmcnt(0)")
        for i in range(0, 8, 2):
            A("  v_pk_add_f32 %s, %s, %s" % (vr(SM + i, 2), vr(SM + i, 2), vr(SM + 8 + i, 2)))
            A("  v_pk_add_f32 %s, %s, %s" % (vr(SM + 16 + i, 2), vr(SM + 16 + i, 2), vr(SM + 24 + i, 2)))
        for i in range(0, 8, 2):
            A("  v_pk_add_f32 %s, %s, %s" % (vr(SM + i, 2), vr(SM + i, 2), vr(SM + 16 + i, 2)))
        for i in range(4):
            y = SM + 2 * i
            T1, T3 = T1_ + 8 * (i % 2), T1_ + 8 * (i % 2) + 4
            A("  v_cvt_pk_bf16_f32 v%d, v%d, v%d" % (T3, y, y + 1))
            A("  v_lshlrev_b32 v%d, 16, v%d" % (T1, EX + i))
            A("  v_and_b32 v%d, s64, v%d" % (T1 + 1, EX + i))
            A("  v_lshlrev_b32 v%d, 16, v%d" % (y, T3))
            A("  v_and_b32 v%d, s64, v%d" % (y + 1, T3))
            A("  v_pk_mul_f32 %s, %s, %s" % (vr(T1, 2), vr(T1, 2), vr(ED, 2)))
            A("  v_cvt_pk_bf16_f32 v%d, v%d, v%d" % (T3, T1, T1 + 1))
            A("  v_lshlrev_b32 v%d, 16, v%d" % (T1, T3))
            A("  v_and_b32 v%d, s64, v%d" % (T1 + 1, T3))
            A("  v_pk_add_f32 %s, %s, %s" % (vr(y, 2), vr(y, 2), vr(T1, 2)))
            A("  v_cvt_pk_bf16_f32 v%d, v%d, v%d" % (T3, y, y + 1))
            A("  v_lshlrev_b32 v%d, 16, v%d" % (T1, EQ + i))
            A("  v_and_b32 v%d, s64, v%d" % (T1 + 1, EQ + i))
            A("  v_lshlrev_b32 v%d, 16, v%d" % (y, T3))
            A("  v_and_b32 v%d, s64, v%d" % (y + 1, T3))
            A("  v_pk_mul_f32 %s, %s, %s" % (vr(y, 2), vr(y, 2), vr(T1, 2)))
            A("  v_cvt_pk_bf16_f32 v%d, v%d, v%d" % (T3, y, y + 1))
            tofs = (8 * (i // 2) + 2 * (i % 2)) * 16
            if "noouts" not in FL:
                A("  ds_write_b16 v13, v%d offset:%d" % (T3, tofs))
                A("  ds_write_b16_d16_hi v13, v%d offset:%d" % (T3, tofs + 16))
        A("  v_add_u32 v13, 2, v13")
    T1_ = 128
    A("  s_cmp_eq_u32 s41, 0")
    A("  s_cselect_b64 s[76:77], -1, 0")
    issue_loads(0)
    ZR = 16
    for i in range(4):
        A("  v_mov_b32 v%d, 0" % (ZR + i))
    A("  v_cmp_gt_u32 vcc, 128, v0")
    A("  s_and_saveexec_b64 s[68:69], vcc")
    A("  v_lshrrev_b32 v14, 3, v0")
    A("  v_mul_u32_u24 v14, %d, v14" % CS)
    A("  v_and_b32 v15, 7, v0")
    A("  v_lshl_add_u32 v14, v15, 4, v14")
    A("  ds_write_b128 v14, %s offset:%d" % (vr(ZR, 4), 4096))
    A("  s_mov_b64 exec, s[68:69]")
    A("  v_lshlrev_b32 v14, 4, v0")
    A("  v_add_u32 v14, %d, v14" % PL0)
    A("  ds_write_b128 v14, %s offset:%d" % (vr(ZR, 4), 0))
    A("  ds_write_b128 v14, %s offset:%d" % (vr(ZR, 4), PL1 - PL0))
    A("  v_cmp_gt_u32 vcc, %d, v0" % (279 - 256))
    A("  s_and_saveexec_b64 s[68:69], vcc")
    A("  ds_write_b128 v14, %s offset:%d" % (vr(ZR, 4), 4096))
    A("  ds_write_b128 v14, %s offset:%d" % (vr(ZR, 4), PL1 - PL0 + 4096))
    A("  s_mov_b64 exec, s[68:69]")
    A("  s_waitcnt vmcnt(0)")
    build()
    issue_loads(1)
    A("  s_waitcnt lgkmcnt(0)")
    A("  s_barrier")
    A("L_k2_hloop:")
    hstamp()
    A("  s_waitcnt vmcnt(0)")
    hstamp()
    A("  s_cmp_eq_u32 s%d, 7" % S_CNT)
    A("  s_cbranch_scc1 L_k2_hnobuild")
    build()
    A("L_k2_hnobuild:")
    if "fine" in FL: hstamp()
    for i in range(4):
        A("  v_mov_b32 v%d, v%d" % (EX2 + i, EX + i))
        A("  v_mov_b32 v%d, v%d" % (EQ2 + i, EQ + i))
    A("  v_mov_b32 v%d, v%d" % (ED2, ED))
    if "fine" in FL: hstamp()
    issue_epi()
    if "fine" in FL: hstamp()
    issue_loads(2)
    A("  s_waitcnt lgkmcnt(0)")
    hstamp()
    A("  s_barrier")
    hstamp()
    A("  s_cmp_eq_u32 s%d, 0" % S_CNT)
    A("  s_cbranch_scc1 L_k2_hskip")
    epilogue(EX2, EQ2, ED2)
    A("  s_waitcnt lgkmcnt(0)")
    A("L_k2_hskip:")
    hstamp()
    A("  s_add_u32 s%d, s%d, 1" % (S_CH, S_CH))
    A("  s_add_u32 s%d, s%d, 1" % (S_CNT, S_CNT))
    A("  s_barrier")
    A("  s_cmp_lt_u32 s%d, 8" % S_CNT)
    A("  s_cbranch_scc1 L_k2_hloop")
    A("  s_waitcnt vmcnt(0)")
    A("  s_barrier")
    epilogue(EX, EQ, ED)
    A("  s_waitcnt lgkmcnt(0)")
    A("L_k2_final:")
    A("  s_barrier")
    stamp()
    A("  v_lshlrev_b32 v14, 4, v229")
    A("  v_lshrrev_b32 v15, 6, v229")
    A("  v_lshl_add_u32 v14, v15, 4, v14")
    A("  v_add_u32 v14, %d, v14" % OUTS)
    for i in range(4):
        A("  ds_read_b128 %s, v14 offset:%d" % (vr(96 + 4 * i, 4), i * (512 * 16 + 128)))
    A("  s_lshl_b32 s3, s41, 11")
    A("  s_lshl_b32 s74, s42, 1")
    A("  s_add_u32 s3, s3, s74")
    A("  v_lshlrev_b32 v15, 12, v229")
    A("  v_add_u32 v15, s3, v15")
    for i in range(4):
        A("  s_waitcnt lgkmcnt(%d)" % (3 - i))
        A("  v_add_u32 v14, 0x%x, v15" % (i * 512 * 4096))
        A("  buffer_store_dwordx4 %s, v14, s[60:63], 0 offen" % vr(96 + 4 * i, 4))
    if "stamp" in FL:
        A("  s_waitcnt vmcnt(0)")
        stamp()
        A("  s_cmp_lg_u32 s75, 0")
        A("  s_cbranch_scc1 L_k2_end")
        stamp_flush("L_k2_end")
    if "stamph" in FL:
        A("  s_cmp_lg_u32 s75, 4")
        A("  s_cbranch_scc1 L_k2_end")
        FL.add("stamp"); stamp_flush("L_k2_end"); FL.discard("stamp")
    A("L_k2_end:")
    A("  s_endpgm")

def k2i():
    A(".globl conv_kernel")
    A(".p2align 8")
    A(".type conv_kernel,@function")
    A("conv_kernel:")
    A("  s_cmp_ge_u32 s2, 256")
    A("  s_cbranch_scc1 L_k2_end")
    load_kernargs()
    stamp_init(); stamp()
    A("  s_and_b32 s3, s2, 7")
    A("  s_lshr_b32 s40, s2, 3")
    A("  s_lshr_b32 s41, s40, 4")
    A("  s_and_b32 s40, s40, 15")
    A("  s_lshl_b32 s42, s3, 7")
    A("  s_lshl_b32 s40, s40, 3")
    A("  s_add_u32 s42, s42, s40")
    A("  s_lshl_b32 s3, s41, 22")
    A("  s_add_u32 s44, s%d, s3" % P_WS)
    A("  s_addc_u32 s45, s%d, 0" % (P_WS + 1))
    A("  s_and_b32 s45, s45, 0xffff")
    A("  s_mov_b32 s46, 0x%x" % (4 * MB))
    A("  s_mov_b32 s47, 0x00020000")
    A("  s_add_u32 s48, s%d, 0x%x" % (P_WS, WS_KA))
    A("  s_addc_u32 s49, s%d, 0" % (P_WS + 1))
    A("  s_cmp_eq_u32 s41, 0")
    A("  s_cselect_b32 s48, s48, s%d" % P_SSK)
    A("  s_cselect_b32 s49, s49, s%d" % (P_SSK + 1))
    A("  s_and_b32 s49, s49, 0xffff")
    A("  s_mov_b32 s50, 0x%x" % (4 * MB))
    A("  s_mov_b32 s51, 0x00020000")
    srd(52, P_WS, 4 * MB, WS_Q)
    A("  s_cmp_eq_u32 s41, 0")
    A("  s_cselect_b32 s56, s%d, s%d" % (P_DSK, P_SSD))
    A("  s_cselect_b32 s57, s%d, s%d" % (P_DSK + 1, P_SSD + 1))
    A("  s_and_b32 s57, s57, 0xffff")
    A("  s_mov_b32 s58, 2048")
    A("  s_mov_b32 s59, 0x00020000")
    srd(60, P_OUT, 8 * MB)
    A("  s_mov_b32 s64, 0xffff0000")
    A("  s_mov_b32 s65, 0x0000ffff")
    A("  s_cmp_eq_u32 s41, 0")
    A("  s_cselect_b64 s[76:77], -1, 0")
    A("  s_lshl_b32 s70, s42, 12")
    A("  v_and_b32 v1, 63, v0")
    A("  v_lshrrev_b32 v2, 6, v0")
    A("  v_and_b32 v3, 31, v0")
    A("  v_bfe_u32 v4, v0, 5, 1")
    A("  v_cmp_eq_u32 s[66:67], 0, v0")
    A("  v_and_b32 v14, 7, v3")
    A("  v_sub_u32 v14, 7, v14")
    A("  v_mul_u32_u24 v5, %d, v14" % CS)
    A("  v_lshrrev_b32 v14, 3, v3")
    A("  v_sub_u32 v14, v4, v14")
    A("  v_lshlrev_b32 v14, 4, v14")
    A("  v_add_u32 v5, v5, v14")
    A("  v_add_u32 v5, %d, v5" % (COPY0 + 16 * 255 - 32 * 30))
    A("  v_lshlrev_b32 v14, 10, v2")
    A("  v_sub_u32 v5, v5, v14")
    A("  v_lshlrev_b32 v14, 3, v2")
    A("  v_sub_u32 v14, v3, v14")
    A("  v_add_u32 v14, 24, v14")
    A("  v_mul_u32_u24 v6, 144, v14")
    A("  v_lshl_add_u32 v6, v4, 4, v6")
    A("  v_add_u32 v6, %d, v6" % PL0)
    A("  v_add_u32 v15, %d, v5" % (COPY1 - COPY0))
    A("  v_add_u32 v16, %d, v6" % (PL1 - PL0))
    A("  v_lshlrev_b32 v10, 11, v2")
    A("  v_lshl_add_u32 v10, v1, 4, v10")
    A("  v_add_u32 v10, %d, v10" % RED)
    A("  v_lshlrev_b32 v7, 4, v0")
    A("  v_add_u32 v7, s70, v7")
    A("  v_lshrrev_b32 v14, 3, v0")
    A("  v_mul_u32_u24 v8, 144, v14")
    A("  v_and_b32 v14, 7, v0")
    A("  v_lshl_add_u32 v8, v14, 4, v8")
    A("  v_add_u32 v8, %d, v8" % (PL0 + 31 * 144))
    A("  v_add_u32 v18, %d, v8" % (PL1 - PL0))
    A("  v_sub_u32 v9, 255, v0")
    A("  v_lshlrev_b32 v9, 4, v9")
    A("  v_add_u32 v19, %d, v9" % (COPY1 - COPY0))
    A("  v_lshlrev_b32 v11, 13, v2")
    A("  v_lshl_add_u32 v11, v1, 4, v11")
    A("  v_add_u32 v11, %d, v11" % RED)
    A("  v_lshlrev_b32 v14, 6, v3")
    A("  v_lshl_add_u32 v14, v2, 4, v14")
    A("  v_lshl_add_u32 v14, v4, 2, v14")
    A("  v_lshlrev_b32 v12, 1, v14")
    A("  v_add_u32 v12, s70, v12")
    A("  v_lshlrev_b32 v13, 4, v14")
    A("  v_lshl_add_u32 v13, v3, 4, v13")
    A("  v_add_u32 v13, %d, v13" % OUTS)
    A("  s_lshl_b32 s3, s42, 1")
    A("  v_mov_b32 v17, s3")
    A("  v_mov_b32 v20, 0x3f803f80")
    AF, BF = 32, 96
    CUR, PRV, KPL = 128, 132, 136
    ROT, ROT2, MIX, MIX2 = 140, 148, 156, 164
    EXs, EQs, EDs = (172, 182), (176, 186), (180, 190)
    SM, T1_ = 192, 224
    issued = []
    st = {"done": -1}
    vm = []
    def emit(it):
        k = it[0]
        if k == "v":
            A(it[1])
        elif k == "lds":
            A(it[1]); issued.append(it[2])
        elif k == "need":
            need(it[1])
        elif k == "vm":
            A(it[1]); vm.append(it[2])
        elif k == "vneed":
            vneed(it[1])
    def need(tags):
        idx = max(issued.index(t) for t in tags)
        if idx > st["done"]:
            n = len(issued) - 1 - idx
            assert n <= 15, n
            A("  s_waitcnt lgkmcnt(%d)" % n)
            st["done"] = idx
    def vneed(tags):
        idx = max(vm.index(t) for t in tags if t in vm) if any(t in vm for t in tags) else -1
        if idx >= 0:
            A("  s_waitcnt vmcnt(%d)" % (len(vm) - 1 - idx))
            del vm[:idx + 1]
    def f_loads(ch):
        if ch > 7:
            return []
        off = 4096 * ch
        return [("v", "  v_add_u32 v14, %d, v7" % off), ("v", "  v_subrev_u32 v21, 16, v14"),
                ("vm", "  buffer_load_dwordx4 %s, v14, s[44:47], 0 offen" % vr(CUR, 4), ("x", ch)),
                ("vm", "  buffer_load_dwordx4 %s, v21, s[44:47], 0 offen" % vr(PRV, 4), ("x", ch)),
                ("vm", "  buffer_load_dwordx4 %s, v14, s[48:51], 0 offen" % vr(KPL, 4), ("x", ch))]
    def f_epi_loads(ch):
        EX, EQ, ED = EXs[ch % 2], EQs[ch % 2], EDs[ch % 2]
        off = 4096 * ch
        return [("v", "  v_add_u32 v22, %d, v12" % off),
                ("vm", "  buffer_load_dwordx2 %s, v22, s[44:47], 0 offen" % vr(EX, 2), ("e", ch)),
                ("vm", "  buffer_load_dwordx2 %s, v22, s[44:47], 0 offen offset:16" % vr(EX + 2, 2), ("e", ch)),
                ("vm", "  buffer_load_dwordx2 %s, v22, s[52:55], 0 offen" % vr(EQ, 2), ("e", ch)),
                ("vm", "  buffer_load_dwordx2 %s, v22, s[52:55], 0 offen offset:16" % vr(EQ + 2, 2), ("e", ch)),
                ("vm", "  buffer_load_ushort v%d, v17, s[56:59], 0 offen offset:%d" % (ED, 2 * ch), ("e", ch))]
    def f_build(ch):
        if ch > 7:
            return []
        vp, vc = (8, 9) if ch % 2 == 0 else (18, 19)
        o = [("vneed", [("x", ch)])]
        o.append(("lds", "  ds_write_b128 v%d, %s" % (vp, vr(KPL, 4)), ("bw", ch, 8)))
        for i in range(4):
            o.append(("v", "  v_cndmask_b32 v%d, v%d, 0, s[66:67]" % (PRV + i, PRV + i)))
        W = [PRV + 0, PRV + 1, PRV + 2, PRV + 3, CUR + 0, CUR + 1, CUR + 2, CUR + 3]
        for k in range(7):
            o.append(("v", "  v_alignbit_b32 v%d, v%d, v%d, 16" % (ROT + k, W[7 - k], W[7 - k])))
            o.append(("v", "  v_bfi_b32 v%d, s65, v%d, v%d" % (MIX + k, W[7 - k], W[6 - k])))
        for k in range(1, 7):
            o.append(("v", "  v_alignbit_b32 v%d, v%d, v%d, 16" % (ROT2 + k - 1, W[7 - k], W[7 - k])))
            o.append(("v", "  v_bfi_b32 v%d, s65, v%d, v%d" % (MIX2 + k - 1, W[7 - k], W[6 - k])))
        for sg in range(4):
            r = ROT + sg if sg % 2 == 0 else ROT2 + sg - 1
            m = MIX + sg if sg % 2 == 0 else MIX2 + sg - 1
            o.append(("lds", "  ds_write_b128 v%d, %s offset:%d" % (vc, vr(r, 4), (2 * sg) * CS), ("bw", ch, 2 * sg)))
            o.append(("lds", "  ds_write_b128 v%d, %s offset:%d" % (vc, vr(m, 4), (2 * sg + 1) * CS), ("bw", ch, 2 * sg + 1)))
        return o
    def f_red(ch):
        b_ = 32 * (ch % 2)
        o = []
        for Q in range(4):
            o.append(("lds", "  ds_write_b128 v10, a[%d:%d] offset:%d" % (b_ + 8 * Q, b_ + 8 * Q + 3, Q * 8192), ("R", ch, 2 * Q)))
            o.append(("lds", "  ds_write_b128 v10, a[%d:%d] offset:%d" % (b_ + 8 * Q + 4, b_ + 8 * Q + 7, Q * 8192 + 1024), ("R", ch, 2 * Q + 1)))
        return o
    def f_epi(ch):
        EX, EQ, ED = EXs[ch % 2], EQs[ch % 2], EDs[ch % 2]
        o = []
        for src in range(4):
            o.append(("lds", "  ds_read_b128 %s, v11 offset:%d" % (vr(SM + 8 * src, 4), src * 2048), ("rr", ch, 2 * src)))
            o.append(("lds", "  ds_read_b128 %s, v11 offset:%d" % (vr(SM + 8 * src + 4, 4), src * 2048 + 1024), ("rr", ch, 2 * src + 1)))
        o.append(("vneed", [("e", ch)]))
        o.append(("v", "  v_lshlrev_b32 v%d, 16, v%d" % (ED, ED)))
        for i in range(4):
            o.append(("v", "  v_cndmask_b32 v%d, v%d, v20, s[76:77]" % (EQ + i, EQ + i)))
        o.append(("need", [("rr", ch, i) for i in range(8)]))
        for i in range(0, 8, 2):
            o.append(("v", "  v_pk_add_f32 %s, %s, %s" % (vr(SM + i, 2), vr(SM + i, 2), vr(SM + 8 + i, 2))))
            o.append(("v", "  v_pk_add_f32 %s, %s, %s" % (vr(SM + 16 + i, 2), vr(SM + 16 + i, 2), vr(SM + 24 + i, 2))))
        for i in range(0, 8, 2):
            o.append(("v", "  v_pk_add_f32 %s, %s, %s" % (vr(SM + i, 2), vr(SM + i, 2), vr(SM + 16 + i, 2))))
        for i in range(4):
            y = SM + 2 * i
            T1, T3 = T1_ + 8 * (i % 2), T1_ + 8 * (i % 2) + 4
            for t in ["  v_cvt_pk_bf16_f32 v%d, v%d, v%d" % (T3, y, y + 1),
                      "  v_lshlrev_b32 v%d, 16, v%d" % (T1, EX + i),
                      "  v_and_b32 v%d, s64, v%d" % (T1 + 1, EX + i),
                      "  v_lshlrev_b32 v%d, 16, v%d" % (y, T3),
                      "  v_and_b32 v%d, s64, v%d" % (y + 1, T3),
                      "  v_pk_mul_f32 %s, %s, %s op_sel_hi:[1,0]" % (vr(T1, 2), vr(T1, 2), vr(ED, 2)),
                      "  v_cvt_pk_bf16_f32 v%d, v%d, v%d" % (T3, T1, T1 + 1),
                      "  v_lshlrev_b32 v%d, 16, v%d" % (T1, T3),
                      "  v_and_b32 v%d, s64, v%d" % (T1 + 1, T3),
                      "  v_pk_add_f32 %s, %s, %s" % (vr(y, 2), vr(y, 2), vr(T1, 2)),
                      "  v_cvt_pk_bf16_f32 v%d, v%d, v%d" % (T3, y, y + 1),
                      "  v_lshlrev_b32 v%d, 16, v%d" % (T1, EQ + i),
                      "  v_and_b32 v%d, s64, v%d" % (T1 + 1, EQ + i),
                      "  v_lshlrev_b32 v%d, 16, v%d" % (y, T3),
                      "  v_and_b32 v%d, s64, v%d" % (y + 1, T3),
                      "  v_pk_mul_f32 %s, %s, %s" % (vr(y, 2), vr(y, 2), vr(T1, 2)),
                      "  v_cvt_pk_bf16_f32 v%d, v%d, v%d" % (T3, y, y + 1)]:
                o.append(("v", t))
            tofs = (8 * (i // 2) + 2 * (i % 2)) * 16 + 2 * ch
            o.append(("lds", "  ds_write_b16 v13, v%d offset:%d" % (T3, tofs), ("ow", ch, 2 * i)))
            o.append(("lds", "  ds_write_b16_d16_hi v13, v%d offset:%d" % (T3, tofs + 16), ("ow", ch, 2 * i + 1)))
        return o
    for it in f_loads(0):
        emit(it)
    ZR = 24
    for i in range(4):
        A("  v_mov_b32 v%d, 0" % (ZR + i))
    A("  v_cmp_gt_u32 vcc, 128, v0")
    A("  s_and_saveexec_b64 s[68:69], vcc")
    A("  v_lshrrev_b32 v14, 3, v0")
    A("  v_mul_u32_u24 v14, %d, v14" % CS)
    A("  v_and_b32 v21, 7, v0")
    A("  v_lshl_add_u32 v14, v21, 4, v14")
    A("  ds_write_b128 v14, %s offset:%d" % (vr(ZR, 4), 4096))
    A("  s_mov_b64 exec, s[68:69]")
    A("  v_lshlrev_b32 v14, 4, v0")
    A("  v_add_u32 v14, %d, v14" % PL0)
    A("  ds_write_b128 v14, %s offset:%d" % (vr(ZR, 4), 0))
    A("  ds_write_b128 v14, %s offset:%d" % (vr(ZR, 4), PL1 - PL0))
    A("  v_cmp_gt_u32 vcc, %d, v0" % (279 - 256))
    A("  s_and_saveexec_b64 s[68:69], vcc")
    A("  ds_write_b128 v14, %s offset:%d" % (vr(ZR, 4), 4096))
    A("  ds_write_b128 v14, %s offset:%d" % (vr(ZR, 4), PL1 - PL0 + 4096))
    A("  s_mov_b64 exec, s[68:69]")
    for it in f_build(0):
        emit(it)
    for it in f_loads(1) + f_epi_loads(0):
        emit(it)
    A("  s_waitcnt lgkmcnt(0)")
    st["done"] = len(issued) - 1
    A("  s_barrier")
    NR = 16
    def a_reg(ch, crel):
        return AF + 4 * ((ch * 34 + crel + 3) % NR)
    def b_reg(dd, ks):
        return BF + 16 * (dd % 2) + 4 * ks
    def rdA(ch, c):
        return ("lds", "  ds_read_b128 %s, v%d offset:%d" % (vr(a_reg(ch, c), 4), 5 if ch % 2 == 0 else 15, 32 * (30 - c)), ("A", ch, c))
    def rdB(ch, dd, ks):
        return ("lds", "  ds_read_b128 %s, v%d offset:%d" % (vr(b_reg(dd, ks), 4), 6 if ch % 2 == 0 else 16, (7 - dd) * 144 + 32 * ks), ("B", ch, dd, ks))
    def reads_for(ch, dd):
        if dd == 0:
            return [rdB(ch, 0, 0), rdA(ch, 0), rdA(ch, 2), rdB(ch, 0, 1), rdA(ch, -1), rdA(ch, 1), rdB(ch, 0, 2), rdA(ch, -2), rdB(ch, 0, 3), rdA(ch, -3)]
        c = 4 * dd
        return [rdB(ch, dd, 0), rdA(ch, c), rdA(ch, c + 2), rdB(ch, dd, 1), rdA(ch, c - 1), rdA(ch, c + 1), rdB(ch, dd, 2), rdB(ch, dd, 3)]
    for it in reads_for(0, 0):
        emit(it)
    for ch in range(8):
        if "stamp" in FL:
            stamp(); st["done"] = len(issued) - 1
        acc0 = 32 * (ch % 2)
        fill = {}
        def sched(items, lo, hi):
            n = len(items)
            for i, it in enumerate(items):
                fill.setdefault(lo + (i * (hi - lo)) // max(n, 1), []).append(it)
        if ch > 0:
            sched(f_red(ch - 1), 6, 14)
        sched(f_build(ch + 1), 16, 30)
        if ch > 0:
            sched(f_epi(ch - 1), 24, 46)
        sched(f_loads(ch + 2) + (f_epi_loads(ch + 1) if ch < 7 else []), 48, 56)
        for dd in range(8):
            if dd < 7:
                pf = reads_for(ch, dd + 1)
            elif ch < 7:
                pf = reads_for(ch + 1, 0)
            else:
                pf = []
            k = 0
            for ks in range(4):
                for mt in range(2):
                    slot = 2 * ks + mt
                    c = 4 * dd + 2 * mt - ks
                    need([("A", ch, c), ("B", ch, dd, ks)])
                    acc = "a[%d:%d]" % (acc0 + 16 * mt, acc0 + 16 * mt + 15)
                    srcc = "0" if (dd == 0 and ks == 0) else acc
                    A("  v_mfma_f32_32x32x16_bf16 %s, %s, %s, %s" % (acc, vr(a_reg(ch, c), 4), vr(b_reg(dd, ks), 4), srcc))
                    quota = -(-len(pf) * (slot + 1) // 8)
                    while k < quota:
                        emit(pf[k]); k += 1
                    for it in fill.get(8 * dd + slot, []):
                        emit(it)
            if dd == 1:
                if ch > 0:
                    need([("R", ch - 1, i) for i in range(8)])
                A("  s_barrier")
            if dd == 5:
                tags = [t for t in issued if t[0] in ("bw", "rr", "ow")]
                if tags:
                    need(tags)
                A("  s_barrier")
    A("  s_nop 7")
    A("  s_nop 3")
    for it in f_red(7):
        emit(it)
    A("  s_waitcnt lgkmcnt(0)")
    st["done"] = len(issued) - 1
    A("  s_barrier")
    for it in f_epi(7):
        emit(it)
    A("  s_waitcnt lgkmcnt(0)")
    A("  s_barrier")
    stamp()
    A("  v_lshlrev_b32 v14, 4, v0")
    A("  v_lshrrev_b32 v21, 6, v0")
    A("  v_lshl_add_u32 v14, v21, 4, v14")
    A("  v_add_u32 v14, %d, v14" % OUTS)
    for i in range(8):
        A("  ds_read_b128 %s, v14 offset:%d" % (vr(96 + 4 * i, 4), i * (256 * 16 + 64)))
    A("  s_lshl_b32 s3, s41, 11")
    A("  s_lshl_b32 s74, s42, 1")
    A("  s_add_u32 s3, s3, s74")
    A("  v_lshlrev_b32 v21, 12, v0")
    A("  v_add_u32 v21, s3, v21")
    for i in range(8):
        A("  s_waitcnt lgkmcnt(%d)" % (7 - i))
        A("  v_add_u32 v14, 0x%x, v21" % (i * 256 * 4096))
        A("  buffer_store_dwordx4 %s, v14, s[60:63], 0 offen" % vr(96 + 4 * i, 4))
    if "stamp" in FL:
        A("  s_waitcnt vmcnt(0)")
        stamp()
        A("  v_cmp_gt_u32 vcc, 64, v0")
        A("  s_cbranch_vccz L_k2_end")
        stamp_flush("L_k2_end")
    A("L_k2_end:")
    A("  s_endpgm")

def kd2(name, vgpr, agpr):
    A(".p2align 6")
    A(".amdhsa_kernel %s" % name)
    A("  .amdhsa_next_free_vgpr %d" % (vgpr + agpr))
    A("  .amdhsa_next_free_sgpr 102")
    A("  .amdhsa_accum_offset %d" % vgpr)
    A("  .amdhsa_group_segment_fixed_size 0")
    A("  .amdhsa_kernarg_size 128")
    A("  .amdhsa_user_sgpr_count 2")
    A("  .amdhsa_user_sgpr_kernarg_segment_ptr 1")
    A("  .amdhsa_system_sgpr_workgroup_id_x 1")
    A("  .amdhsa_float_denorm_mode_32 3")
    A(".end_amdhsa_kernel")

def kd(name, vgpr, sgpr=102):
    A(".p2align 6")
    A(".amdhsa_kernel %s" % name)
    A("  .amdhsa_next_free_vgpr %d" % vgpr)
    A("  .amdhsa_next_free_sgpr %d" % sgpr)
    A("  .amdhsa_accum_offset %d" % ((vgpr + 3) // 4 * 4))
    A("  .amdhsa_group_segment_fixed_size 0")
    A("  .amdhsa_kernarg_size 128")
    A("  .amdhsa_user_sgpr_count 2")
    A("  .amdhsa_user_sgpr_kernarg_segment_ptr 1")
    A("  .amdhsa_system_sgpr_workgroup_id_x 1")
    A("  .amdhsa_float_denorm_mode_32 3")
    A(".end_amdhsa_kernel")

def main():
    ref = open(OUT + ".ref").read().split("\n")
    for ln in ref:
        if ln.startswith("; Override") or ln.startswith("; grid=") or ln.startswith("; @launch"):
            continue
        if ln.startswith(";"):
            A(ln)
        else:
            break
    A("; @launch kernel=prep_kernel grid=(2560,1,1) block=(128,1,1) lds=%d" % K1_LDS)
    A("; @launch kernel=conv_kernel grid=(256,1,1) block=(%d,1,1) lds=%d" % (512 if 'old2' in FL else 256, K2_LDS))
    A('.amdgcn_target "amdgcn-amd-amdhsa--gfx950"')
    A(".text")
    k1()
    k1_kgen()
    k2i() if 'old2' not in FL else k2()
    A('.section .rodata,"a"')
    kd("prep_kernel", 232 if "stamp1" in FL else 128)
    kd("conv_kernel", 232) if 'old2' in FL else kd2("conv_kernel", 240, 64)
    open(OUTW, "w").write("\n".join(L) + "\n")
    print("wrote", OUT, len(L), "lines; K2_LDS", K2_LDS)

main()
```
